```python
import torch

def _softmax(x, axis=-1):
    return torch.softmax(x, dim=axis)

def _gelu(x):
    return torch.nn.functional.gelu(x, approximate='tanh')

def _silu(x):
    return torch.nn.functional.silu(x)

def _sigmoid(x):
    return torch.sigmoid(x)

def _layernorm(x, axis=-1, eps=1e-05):
    m = x.mean(dim=axis, keepdim=True)
    v = x.var(dim=axis, keepdim=True, unbiased=False)
    return (x - m) / torch.sqrt(v + eps)

def _scatter_add(tgt, idx, src, axis=0):
    return tgt.clone().index_add_(axis, idx, src)

def _segment_sum(src, seg, n):
    out = torch.zeros((n,) + src.shape[1:], dtype=src.dtype)
    return out.index_add_(0, seg, src)

def _pad(x, pw):
    flat = tuple((v for pair in reversed(pw) for v in pair))
    return torch.nn.functional.pad(x, flat)
kernel_name = 'recurrent_scan__mha_block__mixer_gmlp__prompt'

def setup_inputs():

    _w = lambda a: (lambda t: t.to(torch.bfloat16) if t.is_floating_point() else t)(torch.as_tensor(a))

    def _A_setup():
        B, S, D, H = (1, 2048, 576, 32)
        return {'x': _w((lambda *s: torch.randn(*s, dtype=torch.bfloat16) * 0.05)(B, S, D)), 'wqkv': _w((lambda *s: torch.randn(*s, dtype=torch.bfloat16) * 0.05)(D, 3 * D)), 'wo': _w((lambda *s: torch.randn(*s, dtype=torch.bfloat16) * 0.05)(D, D))}
    _A_in = _A_setup()

    def _B_setup():
        B, S, D, F = (1, 2048, 576, 4608)
        Fh = F // 2
        return {'x': _w((lambda *s: torch.randn(*s, dtype=torch.bfloat16) * 0.05)(B, S, D)), 'w_in': _w((lambda *s: torch.randn(*s, dtype=torch.bfloat16) * 1.6)(D, 2 * Fh)), 'w_sp': _w(0.01 * (lambda *s: torch.randn(*s, dtype=torch.bfloat16) * 1.6)(S, S)), 'b_sp': _w(1.0 + 0.01 * (lambda *s: torch.randn(*s, dtype=torch.bfloat16) * 0.05)(S)), 'w_out': _w((lambda *s: torch.randn(*s, dtype=torch.bfloat16) * 0.05)(Fh, D))}
    _B_in = _B_setup()
    return {'A_x': _A_in['x'], 'A_wqkv': _A_in['wqkv'], 'A_wo': _A_in['wo'], 'B_x': _B_in['x'], 'B_w_in': _B_in['w_in'], 'B_w_sp': _B_in['w_sp'], 'B_b_sp': _B_in['b_sp'], 'B_w_out': _B_in['w_out']}

def reference(A_x, A_wqkv, A_wo, B_x, B_w_in, B_w_sp, B_b_sp, B_w_out):

    def _A_ref(x, wqkv, wo):
        B, S, D = x.shape
        H = 32
        Dh = D // H
        qkv = (lambda x, *d: x.permute(*d))((x @ wqkv).reshape(B, S, 3, H, Dh), 2, 0, 3, 1, 4)
        q, k, v = (qkv[0], qkv[1], qkv[2])
        scores = torch.einsum('bhqd,bhkd->bhqk', q, k) * Dh ** (-0.5)
        p = _softmax(scores, axis=-1)
        o = torch.einsum('bhqk,bhkd->bhqd', p, v)
        return (lambda x, *d: x.permute(*d))(o, 0, 2, 1, 3).reshape(B, S, D) @ wo

    def _B_ref(x, w_in, w_sp, b_sp, w_out):
        B, S, D = x.shape
        F = w_in.shape[-1]
        Fh = F // 2
        z = _gelu(torch.einsum('bsd,df->bsf', x, w_in))
        z1 = z[..., :Fh].clone()
        z2 = _layernorm(z[..., Fh:], axis=-1)
        g = torch.einsum('ts,bsf->btf', w_sp, z2) + b_sp[None, :, None]
        return torch.einsum('bsf,fd->bsd', z1 * g, w_out)
    x = A_x
    xn = _layernorm(x, axis=-1)
    s = _A_ref(xn, A_wqkv, A_wo)
    g = _silu(_B_ref(xn, B_w_in, B_w_sp, B_b_sp, B_w_out))
    return x + s * g
```

```python
import re

TRANS = ("v_exp_f32","v_log_f32","v_rcp_f32","v_rsq_f32","v_sqrt_f32","v_sin_f32","v_cos_f32","v_rcp_iflag_f32",
         "v_exp_f16","v_log_f16","v_rcp_f16","v_rsq_f16","v_sqrt_f16")
_reg = re.compile(r'^(-|\|)?(abs\()?([vsa])(\d+)\)?\|?$')
_rng = re.compile(r'^(-|\|)?([vsa])\[(\d+):(\d+)\]\|?$')

def regs_of(op):
    op = op.strip()
    m = _reg.match(op)
    if m: return {(m.group(3), int(m.group(4)))}
    m = _rng.match(op)
    if m: return {(m.group(2), i) for i in range(int(m.group(3)), int(m.group(4))+1)}
    if op == "vcc": return {("s",106),("s",107)}
    if op == "vcc_lo": return {("s",106)}
    if op == "vcc_hi": return {("s",107)}
    if op == "exec": return {("s",126),("s",127)}
    if op == "m0": return {("s",124)}
    return set()

class Ins:
    __slots__=("text","op","ops","mods","kind","wr","rd","passes","srcC","srcAB","dpp","states","lds_dma","stdata")
    def __init__(self, text):
        self.text = text
        t = text.split(";")[0].strip()
        parts = t.split(None,1)
        self.op = parts[0]
        rest = parts[1] if len(parts)>1 else ""
        ops = [o.strip() for o in rest.split(",")] if rest else []
        mods = ""
        if ops:
            last = ops[-1].split(None,1)
            ops[-1] = last[0] if last else ""
            mods = last[1] if len(last)>1 else ""
        self.ops=ops; self.mods=mods
        op=self.op
        self.wr=set(); self.rd=set(); self.passes=0; self.srcC=set(); self.srcAB=set(); self.dpp=False
        self.states=1; self.lds_dma=False; self.stdata=set()
        base = re.sub(r'_(e32|e64|dpp|sdwa)$','',op)
        if op=="s_nop":
            self.kind="nop"; self.states=int(ops[0],0)+1
        elif op.startswith("v_mfma"):
            self.kind="mfma"
            self.wr=regs_of(ops[0]); self.srcAB=regs_of(ops[1])|regs_of(ops[2]); self.srcC=regs_of(ops[3])
            self.rd=self.srcAB|self.srcC
            self.passes = 8 if "32x32x16" in op or "32x32x8" in op else (4 if "16x16" in op else 2)
        elif op.startswith("v_"):
            self.kind="valu"
            self.dpp = ("row_" in mods or "quad_perm" in mods or "wave_" in mods or op.endswith("_dpp"))
            if base.startswith("v_cmp"):
                self.wr=regs_of(ops[0]);
                for o in ops[1:]: self.rd|=regs_of(o)
            elif base in ("v_add_co_u32","v_sub_co_u32","v_addc_co_u32","v_subb_co_u32","v_subrev_co_u32","v_mad_u64_u32"):
                self.wr=regs_of(ops[0])|regs_of(ops[1])
                for o in ops[2:]: self.rd|=regs_of(o)
            elif base.startswith("v_permlane") and "swap" in base:
                self.wr=regs_of(ops[0])|regs_of(ops[1]); self.rd=set(self.wr)
            elif base=="v_nop":
                pass
            else:
                self.wr=regs_of(ops[0])
                for o in ops[1:]: self.rd|=regs_of(o)
                if base in ("v_fmac_f32","v_dot2c_f32_bf16","v_pk_fmac_f16","v_writelane_b32") or self.dpp: self.rd|=self.wr
                if base=="v_cndmask_b32" and len(ops)==3: self.rd|=regs_of("vcc")
        elif op.startswith("buffer_") or op.startswith("global_"):
            self.kind="vmem"
            allm = mods.split()
            if "lds" in allm or "_lds_" in op:
                self.lds_dma=True
                for o in ops: self.rd|=regs_of(o)
                self.rd|=regs_of("m0")
            elif "load" in op:
                self.wr=regs_of(ops[0])
                for o in ops[1:]: self.rd|=regs_of(o)
            else:
                for o in ops: self.rd|=regs_of(o)
                if op.startswith("buffer_"):
                    data=regs_of(ops[0])
                    if "atomic" in op and "sc0" in allm: self.wr=set(data)
                else:
                    if "atomic" in op and "sc0" in allm:
                        self.wr=regs_of(ops[0]); data=regs_of(ops[2])
                    else:
                        data=regs_of(ops[1])
                if len(data)>=3: self.stdata=data
        elif op.startswith("ds_"):
            self.kind="ds"
            if "read" in op or "bpermute" in op or "permute" in op or "swizzle" in op:
                self.wr=regs_of(ops[0])
                for o in ops[1:]: self.rd|=regs_of(o)
            else:
                for o in ops: self.rd|=regs_of(o)
        elif op.startswith("s_"):
            self.kind="salu"
            if op.startswith("s_cmp") or op.startswith("s_cbranch") or op in ("s_branch","s_barrier","s_waitcnt","s_endpgm","s_setprio","s_sleep","s_bitcmp0_b32","s_bitcmp1_b32"):
                for o in ops: self.rd|=regs_of(o)
            else:
                if ops: self.wr=regs_of(ops[0])
                for o in ops[1:]: self.rd|=regs_of(o)
                if "saveexec" in op: self.wr|=regs_of("exec")
        else:
            raise ValueError("unknown instr "+text)

def need(prod, cons):
    n=0
    pk, ck = prod.kind, cons.kind
    vw = {r for r in prod.wr if r[0] in "va"}
    sw = {r for r in prod.wr if r[0]=="s"}
    if pk=="valu":
        if ck=="mfma":
            if vw & cons.rd: n=max(n,2)
            if sw & regs_of("exec"): n=max(n,4)
        if ck=="valu":
            cb=re.sub(r'_(e32|e64|dpp|sdwa)$','',cons.op)
            if re.sub(r'_(e32|e64)$','',prod.op) in TRANS and (vw & cons.rd) : n=max(n,1)
            if cb in ("v_readfirstlane_b32","v_readlane_b32") and (vw & cons.rd): n=max(n,1)
            if cons.dpp and (vw & cons.rd): n=max(n,2)
            if cb.startswith("v_permlane") and (vw & cons.rd): n=max(n,2)
            if sw & cons.rd:
                n=max(n,2)
                if cb in ("v_readlane_b32","v_writelane_b32"): n=max(n,4)
            if ("op_sel" in prod.mods or "sdwa" in prod.op or "dst_sel" in prod.mods) and (vw & (cons.rd|cons.wr)): n=max(n,1)
            if prod.op.startswith("v_dot") and (vw & (cons.rd|cons.wr)):
                if cons.op==prod.op and len(cons.ops)>=4 and regs_of(cons.ops[3])==vw and not (vw & (regs_of(cons.ops[1])|regs_of(cons.ops[2]))): pass
                else: n=max(n,3)
        if ck=="vmem" and (sw & cons.rd): n=max(n,5)
        if prod.op.startswith("v_dot") and ck in ("vmem","ds","mfma") and (vw & cons.rd): n=max(n,3)
    if pk=="mfma":
        p=prod.passes
        if ck=="mfma":
            if vw & cons.srcAB: n=max(n,{2:5,4:8,8:12}[p])
            if vw & cons.srcC:
                if cons.srcC==vw and cons.passes==p: n=max(n,2 if p==2 else 0)
                else: n=max(n,{2:4,4:6,8:10}[p])
            elif vw & cons.wr:
                n=max(n,{2:4,4:6,8:10}[p])
        elif ck in ("valu","vmem","ds"):
            if vw & (cons.rd|cons.wr): n=max(n,{2:5,4:8,8:12}[p])
            if ck=="valu" and (prod.srcC & cons.wr): n=max(n,{2:1,4:3,8:7}[p])
    if pk=="salu":
        if (sw & regs_of("m0")) and cons.kind=="vmem" and cons.lds_dma: n=max(n,1)
    if pk=="vmem" and prod.stdata:
        if cons.wr & prod.stdata: n=max(n, 2 if ck in("valu","mfma") else 1)
    return n

class Asm:
    def __init__(self):
        self.lines=[]
        self.uid=0
    def __call__(self, text):
        for ln in text.split("\n"):
            s=ln.strip()
            if not s: continue
            if s.startswith(";") or s.startswith(".") and not s.endswith(":") :
                self.lines.append(s)
            elif s.endswith(":"):
                self.lines.append(s)
            else:
                self.lines.append(Ins(s))
    def label(self, base="L"):
        self.uid+=1
        return f"{base}_{self.uid}"
    def fix_hazards(self, window=16):
        out=[]; hist=[]
        for it in self.lines:
            if isinstance(it, Ins):
                d=0; req=0
                for p in reversed(hist):
                    if d>=window: break
                    r=need(p,it)-d
                    if r>req: req=r
                    d+=p.states
                if req>0:
                    n=Ins(f"s_nop {req-1}")
                    out.append(n); hist.append(n)
                out.append(it); hist.append(it)
                if it.op in ("s_endpgm","s_branch"): hist=[] if it.op=="s_endpgm" else hist
            else:
                out.append(it)
        self.lines=out
        labels={}
        for i,it in enumerate(self.lines):
            if isinstance(it,str) and it.endswith(":"): labels[it[:-1]]=i
        for i,it in enumerate(self.lines):
            if isinstance(it,Ins) and (it.op.startswith("s_cbranch") or it.op=="s_branch"):
                tgt=labels.get(it.ops[0])
                if tgt is None: raise ValueError("no label "+it.ops[0])
                h=[x for x in self.lines[max(0,i-40):i+1] if isinstance(x,Ins)]
                fwd=[x for x in self.lines[tgt:tgt+40] if isinstance(x,Ins)]
                dist0=0
                for c in fwd:
                    if dist0>=window: break
                    d=dist0
                    for p in reversed(h):
                        if d>=window: break
                        if need(p,c)>d:
                            raise ValueError(f"hazard across branch {it.text}: {p.text} -> {c.text} needs {need(p,c)} has {d}")
                        d+=p.states
                    if c.op in ("s_branch","s_endpgm"): break
                    dist0+=c.states
    def text(self):
        o=[]
        for it in self.lines:
            if isinstance(it,Ins): o.append("    "+it.text)
            else: o.append(it)
        return "\n".join(o)+"\n"

def kernel_begin(a, name):
    a(f".globl {name}")
    a(".p2align 8")
    a(f".type {name},@function")
    a(f"{name}:")

def descriptor(name, nv, ns=96, accum=None):
    if accum is None: accum=(min(nv,256)+3)//4*4
    return f""".p2align 6
.amdhsa_kernel {name}
  .amdhsa_next_free_vgpr {nv}
  .amdhsa_next_free_sgpr {ns}
  .amdhsa_accum_offset {accum}
  .amdhsa_group_segment_fixed_size 0
  .amdhsa_kernarg_size 88
  .amdhsa_user_sgpr_count 2
  .amdhsa_user_sgpr_kernarg_segment_ptr 1
  .amdhsa_system_sgpr_workgroup_id_x 1
  .amdhsa_float_denorm_mode_32 3
  .amdhsa_float_denorm_mode_16_64 3
.end_amdhsa_kernel
"""

def srd(a, d, ptr, nbytes, off=0):
    if off:
        a(f"s_add_u32 s{d}, s{ptr}, {off:#x}")
        a(f"s_addc_u32 s{d+1}, s{ptr+1}, 0")
    else:
        a(f"s_mov_b32 s{d}, s{ptr}")
        a(f"s_mov_b32 s{d+1}, s{ptr+1}")
    a(f"s_mov_b32 s{d+2}, {nbytes:#x}")
    a(f"s_mov_b32 s{d+3}, 0x00020000")

def v(i, n=1):
    return f"v{i}" if n==1 else f"v[{i}:{i+n-1}]"
def s(i, n=1):
    return f"s{i}" if n==1 else f"s[{i}:{i+n-1}]"

import os
STAMP = os.environ.get("STAMP","0")=="1"
class Stamper:
    def __init__(self, a, base=56, maxn=20):
        self.a=a; self.base=base; self.n=0; self.maxn=maxn; self.names=[]
    def __call__(self, name):
        if not STAMP: return
        assert self.n<self.maxn
        r=self.base+2*self.n
        self.a(f"s_memtime s[{r}:{r+1}]")
        self.a("s_waitcnt lgkmcnt(0)")
        self.n+=1; self.names.append(name)
    def dump(self, srd, swave_global, off, vt):
        if not STAMP: return
        a=self.a
        a("s_mov_b64 exec, 1")
        a(f"s_lshl_b32 s{self.base-1}, s{swave_global}, 7")
        a(f"s_add_u32 s{self.base-1}, s{self.base-1}, {off}")
        a(f"v_mov_b32 v{vt+1}, 0")
        for i in range(self.n):
            a(f"v_mov_b32 v{vt}, s{self.base+2*i}")
            a(f"buffer_store_dword v{vt}, v{vt+1}, s[{srd}:{srd+3}], s{self.base-1} offen offset:{4*i}")
        print("stamps:", self.names)
```

```python
MB = 1<<20
WS_XNF = 0*MB
WS_HO  = 3*MB
WS_Z2N = 15*MB
WS_QF  = 25*MB
WS_KV  = 28*MB
WS_WF  = 33*MB
WS_ST  = 37*MB
WS_CNT = 37*MB + 524288
WS_DBG = 38*MB
WS_END = 40*MB
KA_X, KA_WQKV, KA_WO, KA_BX, KA_WIN, KA_WSP, KA_BSP, KA_WOUT, KA_OUT, KA_DBG, KA_WS = [8*i for i in range(11)]
import struct
def f32(x): return struct.unpack("<I", struct.pack("<f", x))[0]
```

```python
from asmlib import *
from layout import *

def bf16r(a, dst, src):
    a(f"v_cvt_pk_bf16_f32 {dst}, {src}, {src}")
    a(f"v_lshlrev_b32 {dst}, 16, {dst}")

def rowsum16(a, x, t):
    for sh in (8,4,2,1):
        a(f"v_add_f32_dpp {x}, {x}, {x} row_ror:{sh} row_mask:0xf bank_mask:0xf")

def gen_p0(a, name="p0_kernel"):
    kernel_begin(a, name)
    END = f"{name}_end"; TILE=f"{name}_tile"
    a(f"""
s_cmp_ge_u32 s2, 230
s_cbranch_scc1 {END}
s_load_dwordx2 s[4:5], s[0:1], {KA_X}
s_load_dwordx2 s[6:7], s[0:1], {KA_WS}
s_load_dwordx2 s[16:17], s[0:1], {KA_WOUT}
s_load_dwordx2 s[18:19], s[0:1], {KA_WO}
s_cmp_ge_u32 s2, 128
s_cbranch_scc1 {TILE}
v_lshrrev_b32 v1, 4, v0
s_lshl_b32 s3, s2, 4
v_add_u32 v1, s3, v1               ; s
v_and_b32 v2, 15, v0               ; j
v_mul_u32_u24 v3, 1152, v1
v_lshl_add_u32 v3, v2, 3, v3
s_waitcnt lgkmcnt(0)
""")
    srd(a, 8, 4, 2048*1152)
    srd(a, 12, 6, WS_END)
    for i in range(9):
        a(f"buffer_load_dwordx2 {v(10+2*i,2)}, v3, s[8:11], 0 offen offset:{i*128}")
    a(f"""
v_lshrrev_b32 v4, 5, v1
v_mul_u32_u24 v4, 36864, v4
v_and_b32 v5, 31, v1
v_lshl_add_u32 v4, v5, 4, v4
v_lshrrev_b32 v5, 1, v2
v_lshl_add_u32 v4, v5, 9, v4       ; (j>>1)*512 = (j>>2)*1024 + ((j>>1)&1)*512
v_and_b32 v5, 1, v2
v_lshl_add_u32 v4, v5, 3, v4
v_mov_b32 v6, 0
v_lshlrev_b32 v5, 7, v0
v_add_u32 v5, {WS_CNT}, v5
v_cmp_gt_u32 vcc, 64, v0
s_cmp_eq_u32 s2, 0
s_cselect_b64 s[22:23], -1, 0
s_and_b64 vcc, vcc, s[22:23]
s_and_saveexec_b64 s[20:21], vcc
s_cbranch_execz {name}_nocnt
buffer_store_dword v6, v5, s[12:15], 0 offen sc1
{name}_nocnt:
s_mov_b64 exec, s[20:21]
""")
    for i in range(1,9):
        a(f"s_movk_i32 s{24+i}, {i*4096 if i*4096 < 32768 else 0}")
    a("s_mov_b32 s32, 32768")
    a("s_waitcnt vmcnt(0)")
    for i in range(18):
        a(f"v_lshlrev_b32 v{30+2*i}, 16, v{10+i}")
        a(f"v_and_b32 v{31+2*i}, 0xffff0000, v{10+i}")
    a("v_add_f32 v6, v30, v31")
    a("v_add_f32 v7, v32, v33")
    for i in range(4,36,2):
        a(f"v_add_f32 v6, v6, v{30+i}")
        a(f"v_add_f32 v7, v7, v{31+i}")
    a("v_add_f32 v6, v6, v7")
    rowsum16(a,"v6",None)
    a(f"v_mul_f32 v6, {f32(1.0/576):#x}, v6")
    a("v_mov_b32 v7, 0\nv_mov_b32 v8, 0")
    for i in range(0,36,2):
        a(f"v_sub_f32 v66, v{30+i}, v6")
        a(f"v_sub_f32 v67, v{31+i}, v6")
        a("v_fmac_f32 v7, v66, v66")
        a("v_fmac_f32 v8, v67, v67")
    a("v_add_f32 v7, v7, v8")
    rowsum16(a,"v7",None)
    a(f"v_mul_f32 v7, {f32(1.0/576):#x}, v7")
    bf16r(a,"v6","v6")
    bf16r(a,"v7","v7")
    a(f"v_add_f32 v7, {f32(1e-5):#x}, v7")
    bf16r(a,"v7","v7")
    a("v_sqrt_f32 v7, v7")
    bf16r(a,"v7","v7")
    a("v_rcp_f32 v7, v7")
    for i in range(18):
        a(f"v_sub_f32 v{30+2*i}, v{30+2*i}, v6")
        a(f"v_sub_f32 v{31+2*i}, v{31+2*i}, v6")
        a(f"v_cvt_pk_bf16_f32 v{10+i}, v{30+2*i}, v{31+2*i}")
    for i in range(18):
        a(f"v_lshlrev_b32 v{30+2*i}, 16, v{10+i}")
        a(f"v_and_b32 v{31+2*i}, 0xffff0000, v{10+i}")
        a(f"v_mul_f32 v{30+2*i}, v{30+2*i}, v7")
        a(f"v_mul_f32 v{31+2*i}, v{31+2*i}, v7")
        a(f"v_cvt_pk_bf16_f32 v{10+i}, v{30+2*i}, v{31+2*i}")
        if i%2==1:
            k=i//2
            a(f"buffer_store_dwordx2 {v(10+2*k,2)}, v4, s[12:15], {'0' if k==0 else 's%d'%(24+k)} offen")
    a("s_endpgm")
    a(f"""
{TILE}:
s_sub_u32 s3, s2, 128
s_lshl_b32 s3, s3, 8
v_add_u32 v1, s3, v0
s_mov_b32 s24, {(1<<22)//72+1}
v_mul_lo_u32 v2, v1, s24
v_lshrrev_b32 v2, 22, v2           ; f8g = T/72
v_mul_u32_u24 v3, 72, v2
v_sub_u32 v3, v1, v3               ; d8
s_waitcnt lgkmcnt(0)
s_cmp_ge_u32 s2, 209
s_cselect_b32 s8, s18, s16
s_cselect_b32 s9, s19, s17
s_mov_b32 s10, {2304*1152}
s_cselect_b32 s10, {576*1152}, s10
s_mov_b32 s11, 0x00020000
s_cselect_b32 s25, 288, 0
""")
    srd(a, 12, 6, WS_END)
    a(f"""
v_subrev_u32 v4, s25, v2           ; f8 local
v_mul_u32_u24 v4, {8*1152}, v4
v_lshl_add_u32 v4, v3, 4, v4
s_movk_i32 s26, {4*1152}
""")
    for i in range(8):
        a(f"buffer_load_dwordx4 {v(12+4*i,4)}, v4, s[8:11], {'0' if i<4 else 's26'} offen offset:{(i%4)*1152}")
    a(f"""
v_mul_u32_u24 v5, 57, v3
v_lshrrev_b32 v5, 9, v5            ; cb = d8/9  (d8<72)
v_mul_u32_u24 v6, 9, v5
v_sub_u32 v6, v3, v6               ; dl8
v_mul_u32_u24 v5, 90, v5
v_lshrrev_b32 v7, 2, v2
v_add_u32 v5, v5, v7
v_mul_u32_u24 v5, 4608, v5         ; (cb*90+ks)*4608
v_and_b32 v7, 3, v2                ; g
v_lshrrev_b32 v8, 1, v6
v_lshlrev_b32 v8, 10, v8           ; fr*1024
v_add_u32 v5, v5, v8
v_and_b32 v8, 1, v6
v_lshlrev_b32 v8, 7, v8
v_add_u32 v5, v5, v8               ; + (dl8&1)*128
v_lshlrev_b32 v8, 8, v7            ; g*256
v_lshlrev_b32 v9, 7, v7            ; g*128
v_cmp_eq_u32 vcc, 8, v6
v_cndmask_b32 v8, v8, v9, vcc
v_add_u32 v5, v5, v8
v_add_u32 v5, {WS_WF}, v5
s_mov_b32 s27, 0x05040100
s_mov_b32 s28, 0x07060302
v_cmp_gt_u32 vcc, 25920, v1
s_and_saveexec_b64 s[20:21], vcc
s_cbranch_execz {END}
s_waitcnt vmcnt(0)
""")
    for jj in range(8):
        o = 44 + 4*(jj%2)
        for i in range(4):
            lo = 12+4*(2*i)+(jj>>1); hi = 12+4*(2*i+1)+(jj>>1)
            a(f"v_perm_b32 v{o+i}, v{hi}, v{lo}, {'s27' if jj%2==0 else 's28'}")
        a(f"buffer_store_dwordx4 {v(o,4)}, v5, s[12:15], 0 offen offset:{jj*16}")
    a(f"{END}:")
    a("s_endpgm")
    return 72
```

```python
from asmlib import *
from layout import *
import math

VA   = 0
V_TID=0
V_LANE=1
V_DW = 2
V_DQ = 3
V_T  = 4
V_HO = 8
V_C1 = 9
V_SUM=10; V_SQ=11
V_N16=12
V_HF8=13
V_SIG=14
V_ONES=15
V_TMP=16
V_ACC=32
V_B  = 48
V_PK = 64
V_A  = 96
NV   = 240
S_WS=8; S_WIN=12; S_WQ=16
S_RB=20; S_CG=21; S_W=22; S_GRP=23; S_RB32=24
S_T0=25; S_T1=26; S_T2=27; S_T3=28
S_DW=29
S_DQ=30
S_M0=31
S_HOB=32
S_COL=33
S_SCALE=34; S_QKB=35; S_QKBLK=36
S_EX=38
PANEL=73728
C0 = -2.0*math.log2(math.e)*math.sqrt(2.0/math.pi)
C1 = C0*0.044715
QSCALE = math.log2(math.e)/math.sqrt(18.0)

def dma_panel(a, mat, scol, buf):
    stride = 9216 if mat=='w' else 3456
    sr = S_WIN if mat=='w' else S_WQ
    vo = V_DW if mat=='w' else V_DQ
    sw = S_DW if mat=='w' else S_DQ
    a(f"s_add_u32 s{S_T0}, s{sw}, s{scol}")
    a(f"s_add_u32 m0, s{S_M0}, {buf*PANEL}")
    for i in range(9):
        a(f"buffer_load_dwordx4 v{vo}, {s(sr,4)}, s{S_T0} offen lds")
        if i<8:
            a(f"s_add_u32 s{S_T0}, s{S_T0}, {8*stride}")
            a(f"s_add_u32 m0, m0, 1024")

def mphase(a, buf, tile, normal=False, first=False, pend=0):
    toff = 0 if tile is None else tile*512
    def rd(ks):
        base = V_T + 2*buf + (1 if ks>=16 else 0)
        off = (ks-16 if ks>=16 else ks)*2048 + toff
        b = V_B + 4*(ks%4)
        a(f"ds_read_b64_tr_b16 {v(b,2)}, v{base} offset:{off}")
        a(f"ds_read_b64_tr_b16 {v(b+2,2)}, v{base} offset:{off+256}")
    a("s_setprio 2")
    for ks in range(3): rd(ks)
    for ks in range(36):
        if ks+3 < 36: rd(ks+3)
        left = min(3, 35-ks)
        w = f"s_waitcnt lgkmcnt({2*left})"
        if first: w = f"s_waitcnt vmcnt({pend+35-ks}) lgkmcnt({2*left})"
        a(w)
        b = v(V_B+4*(ks%4),4); x = v(V_A+4*ks,4); acc=v(V_ACC,16)
        c = "0" if ks==0 else acc
        if normal: a(f"v_mfma_f32_32x32x16_bf16 {acc}, {x}, {b}, {c}")
        else:      a(f"v_mfma_f32_32x32x16_bf16 {acc}, {b}, {x}, {c}")
    a("s_setprio 0")
    a("s_nop 10")

def gelu16(a, dst):
    for h in range(2):
        X=[V_ACC+8*h+i for i in range(8)]; T=[V_TMP+i for i in range(8)]
        for x,t in zip(X,T): a(f"v_mul_f32 v{t}, v{x}, v{x}")
        for x,t in zip(X,T): a(f"v_fmaak_f32 v{t}, v{t}, v{V_C1}, {f32(C0):#x}")
        for x,t in zip(X,T): a(f"v_mul_f32 v{t}, v{t}, v{x}")
        for x,t in zip(X,T): a(f"v_exp_f32 v{t}, v{t}")
        for x,t in zip(X,T): a(f"v_add_f32 v{t}, 1.0, v{t}")
        for x,t in zip(X,T): a(f"v_rcp_f32 v{t}, v{t}")
        for x,t in zip(X,T): a(f"v_mul_f32 v{x}, v{x}, v{t}")
        for i in range(4): a(f"v_cvt_pk_bf16_f32 v{dst+4*h+i}, v{X[2*i]}, v{X[2*i+1]}")

def epi_z2(a, idx):
    d = V_PK+8*idx
    gelu16(a, d)
    for i in range(8):
        a(f"v_dot2_f32_bf16 v{V_SUM}, v{d+i}, v{V_ONES}, v{V_SUM}")
        a(f"v_dot2_f32_bf16 v{V_SQ}, v{d+i}, v{d+i}, v{V_SQ}")

def epi_z1(a, tile):
    d = V_TMP+8
    gelu16(a, d)
    a(f"s_lshl_b32 s{S_T1}, s{S_COL}, 5")
    a(f"s_add_u32 s{S_T1}, s{S_T1}, s{S_HOB}")
    a(f"buffer_store_dwordx4 {v(d,4)}, v{V_HO}, {s(S_WS,4)}, s{S_T1} offen offset:{tile*1024}")
    a(f"buffer_store_dwordx4 {v(d+4,4)}, v{V_HO}, {s(S_WS,4)}, s{S_T1} offen offset:{tile*1024+512}")

def epi_qk(a, tile):
    for i in range(16): a(f"v_mul_f32 v{V_ACC+i}, s{S_SCALE}, v{V_ACC+i}")
    for p in range(8): a(f"v_cvt_pk_bf16_f32 v{V_TMP+8+p}, v{V_ACC+2*p}, v{V_ACC+2*p+1}")
    t=V_TMP
    a(f"v_add_u32 v{t}, s{S_COL}, v{V_HF8}")
    a(f"v_lshrrev_b32 v{t+5}, 2, v{V_N16}")
    a(f"v_add_u32 v{t+5}, 1024, v{t+5}")
    for p in range(8):
        cadd = tile*32 + 16*(p>>2) + 2*(p&3)
        a(f"v_add_u32 v{t+1}, {cadd}, v{t}")
        a(f"v_mul_u32_u24 v{t+2}, 3641, v{t+1}")
        a(f"v_lshrrev_b32 v{t+2}, 16, v{t+2}")
        a(f"v_mul_u32_u24 v{t+3}, 18, v{t+2}")
        a(f"v_sub_u32 v{t+1}, v{t+1}, v{t+3}")
        a(f"v_lshrrev_b32 v{t+3}, 3, v{t+1}")
        a(f"v_lshl_add_u32 v{t+3}, v{t+3}, 9, v{V_N16}")
        a(f"v_and_b32 v{t+4}, 7, v{t+1}")
        a(f"v_lshl_add_u32 v{t+3}, v{t+4}, 1, v{t+3}")
        a(f"v_cmp_lt_u32 vcc, 15, v{t+1}")
        a(f"v_mul_lo_u32 v{t+2}, v{t+2}, s{S_QKBLK}")
        a(f"v_cndmask_b32 v{t+3}, v{t+3}, v{t+5}, vcc")
        a(f"v_add_u32 v{t+6+(p&1)}, v{t+3}, v{t+2}")
        a(f"buffer_store_dword v{V_TMP+8+p}, v{t+6+(p&1)}, {s(S_WS,4)}, s{S_QKB} offen")

def epi_v(a, tile):
    for p in range(8): a(f"v_cvt_pk_bf16_f32 v{V_TMP+8+p}, v{V_ACC+2*p}, v{V_ACC+2*p+1}")
    t=V_TMP
    a(f"v_add_u32 v{t}, s{S_COL}, v{V_SIG}")
    if tile: a(f"v_add_u32 v{t}, {tile*32}, v{t}")
    a(f"v_mul_u32_u24 v{t+2}, 3641, v{t}")
    a(f"v_lshrrev_b32 v{t+2}, 16, v{t+2}")
    a(f"v_mul_u32_u24 v{t+3}, 18, v{t+2}")
    a(f"v_sub_u32 v{t+1}, v{t}, v{t+3}")
    a(f"v_mul_u32_u24 v{t+2}, {64*2304}, v{t+2}")
    a(f"v_lshl_add_u32 v{t+2}, v{t+1}, 4, v{t+2}")
    a(f"v_mul_u32_u24 v{t+3}, 36, v{V_HF8}")
    a(f"v_add_u32 v{t+2}, v{t+2}, v{t+3}")
    a(f"s_mul_i32 s{S_T1}, s{S_RB32}, 2304")
    a(f"s_add_u32 s{S_T1}, s{S_T1}, {WS_KV+1152}")
    a(f"buffer_store_dwordx4 {v(V_TMP+8,4)}, v{t+2}, {s(S_WS,4)}, s{S_T1} offen")
    a(f"buffer_store_dwordx4 {v(V_TMP+12,4)}, v{t+2}, {s(S_WS,4)}, s{S_T1} offen offset:576")

def bar_if(a, grp):
    L=a.label("p1b")
    a(f"s_cmp_lg_u32 s{S_GRP}, {grp}")
    a(f"s_cbranch_scc1 {L}")
    a("s_barrier")
    return L

def publish(a):
    t=V_TMP
    a(f"v_permlane32_swap_b32 v{V_SUM}, v{V_SQ}")
    a(f"v_lshlrev_b32 v{t}, 2, v{V_LANE}")
    a(f"s_lshl_b32 s{S_T1}, s{S_RB32}, 5")
    a(f"s_add_u32 s{S_T1}, s{S_T1}, s{S_CG}")
    a(f"s_lshl_b32 s{S_T1}, s{S_T1}, 8")
    a(f"s_add_u32 s{S_T1}, s{S_T1}, {WS_ST}")
    a(f"v_add_f32 v{V_SUM}, v{V_SUM}, v{V_SQ}")
    a(f"buffer_store_dword v{V_SUM}, v{t}, {s(S_WS,4)}, s{S_T1} offen sc1")

def signal(a):
    t=V_TMP
    a(f"v_mov_b32 v{t}, 1")
    a(f"v_mov_b32 v{t+1}, 0")
    a(f"s_lshl_b32 s{S_T1}, s{S_RB32}, 7")
    a(f"s_add_u32 s{S_T1}, s{S_T1}, {WS_CNT}")
    a(f"s_mov_b64 exec, 1")
    a(f"buffer_atomic_add v{t}, v{t+1}, {s(S_WS,4)}, s{S_T1} offen")
    a(f"s_mov_b64 exec, -1")

def gen_p1(a, name="p1_kernel"):
    kernel_begin(a, name)
    END=f"{name}_end"
    st=Stamper(a)
    a(f"""
s_cmp_ge_u32 s2, 256
s_cbranch_scc1 {END}_x
""")
    st("start")
    a(f"""
s_load_dwordx2 s[4:5], s[0:1], {KA_WS}
s_load_dwordx2 s[6:7], s[0:1], {KA_WIN}
s_load_dwordx2 s[40:41], s[0:1], {KA_WQKV}
s_and_b32 s3, s2, 7
s_lshr_b32 s42, s2, 3
s_lshr_b32 s{S_RB}, s3, 2
s_lshl_b32 s{S_RB}, s{S_RB}, 2
s_lshr_b32 s43, s42, 3
s_add_u32 s{S_RB}, s{S_RB}, s43
s_and_b32 s{S_CG}, s3, 3
s_lshl_b32 s{S_CG}, s{S_CG}, 3
s_and_b32 s43, s42, 7
s_add_u32 s{S_CG}, s{S_CG}, s43
v_lshrrev_b32 v1, 6, v0
v_readfirstlane_b32 s{S_W}, v1
v_and_b32 v{V_LANE}, 63, v0
s_lshr_b32 s{S_GRP}, s{S_W}, 2
s_lshl_b32 s{S_RB32}, s{S_RB}, 3
s_add_u32 s{S_RB32}, s{S_RB32}, s{S_W}
s_mul_i32 s{S_DW}, s{S_W}, {72*9216}
s_mul_i32 s{S_DQ}, s{S_W}, {72*3456}
s_mul_i32 s{S_M0}, s{S_W}, 9216
v_and_b32 v16, 31, v{V_LANE}
v_lshrrev_b32 v17, 2, v16              ; row 0..7
v_and_b32 v18, 3, v{V_LANE}
v_lshlrev_b32 v18, 4, v18
v_lshrrev_b32 v19, 5, v{V_LANE}        ; hf
v_lshl_add_u32 v18, v19, 6, v18
v_mul_u32_u24 v{V_DW}, 9216, v17
v_add_u32 v{V_DW}, v{V_DW}, v18
v_mul_u32_u24 v{V_DQ}, 3456, v17
v_add_u32 v{V_DQ}, v{V_DQ}, v18
s_waitcnt lgkmcnt(0)
""")
    srd(a, S_WS, 4, WS_END)
    srd(a, S_WIN, 6, 576*9216)
    srd(a, S_WQ, 40, 576*3456)
    a(f"s_lshl_b32 s{S_T2}, s{S_CG}, 7")
    a(f"s_add_u32 s{S_T2}, s{S_T2}, 4608")
    dma_panel(a,'w',S_T2,0)
    def a_loads():
        a(f"v_lshlrev_b32 v20, 4, v{V_LANE}")
        a(f"s_mul_i32 s{S_T1}, s{S_RB32}, 36864")
        if WS_XNF: a(f"s_add_u32 s{S_T1}, s{S_T1}, {WS_XNF}")
        for ks in range(36):
            a(f"buffer_load_dwordx4 {v(V_A+4*ks,4)}, v20, {s(S_WS,4)}, s{S_T1} offen offset:{(ks%4)*1024}")
            if ks%4==3 and ks<35: a(f"s_add_u32 s{S_T1}, s{S_T1}, 4096")
    def dma_p1():
        a(f"""
s_add_u32 s{S_T2}, s{S_CG}, 68
s_sub_u32 s{S_T3}, s{S_CG}, 4
s_cmp_lt_u32 s{S_CG}, 4
s_cselect_b32 s{S_T2}, s{S_T2}, s{S_T3}
s_lshl_b32 s{S_T2}, s{S_T2}, 7
""")
        dma_panel(a,'w',S_T2,1)
    a(f"""
v_lshlrev_b32 v{V_N16}, 4, v16
v_lshlrev_b32 v{V_HF8}, 3, v19
v_and_b32 v20, 0x13, v16
v_and_b32 v21, 4, v16
v_lshl_add_u32 v20, v21, 1, v20
v_and_b32 v21, 8, v16
v_lshrrev_b32 v21, 1, v21
v_add_u32 v{V_SIG}, v20, v21
v_lshlrev_b32 v20, 10, v19
v_bfe_u32 v21, v{V_LANE}, 2, 2
v_lshl_add_u32 v20, v21, 6, v20
v_bfe_u32 v21, v{V_LANE}, 4, 1
v_lshl_add_u32 v20, v21, 5, v20
v_and_b32 v21, 1, v{V_LANE}
v_lshl_add_u32 v20, v21, 4, v20
v_bfe_u32 v21, v{V_LANE}, 1, 1
v_lshl_add_u32 v{V_T}, v21, 3, v20
v_add_u32 v{V_T+1}, 32768, v{V_T}
v_add_u32 v{V_T+2}, {PANEL}, v{V_T}
v_add_u32 v{V_T+3}, {PANEL+32768}, v{V_T}
v_lshrrev_b32 v20, 4, v16
v_mul_u32_u24 v20, 92160, v20
v_and_b32 v21, 15, v16
v_lshl_add_u32 v20, v21, 4, v20
v_lshl_add_u32 v{V_HO}, v19, 8, v20
s_mul_i32 s{S_HOB}, s{S_RB32}, {2*92160}
s_add_u32 s{S_HOB}, s{S_HOB}, {WS_HO}
v_mov_b32 v{V_C1}, {f32(C1):#x}
v_mov_b32 v{V_SUM}, 0
v_mov_b32 v{V_SQ}, 0
v_mov_b32 v{V_ONES}, 0x3f803f80
""")
    Lg1=a.label("p1g1"); Lj0=a.label("p1j0")
    a(f"s_cmp_lg_u32 s{S_GRP}, 0")
    a(f"s_cbranch_scc1 {Lg1}")
    a_loads()
    a("s_waitcnt vmcnt(36)")
    a("s_barrier")
    mphase(a,0,0,first=True,pend=0)
    dma_p1()
    a(f"s_branch {Lj0}")
    a(f"{Lg1}:")
    a("s_waitcnt vmcnt(0)")
    a("s_barrier")
    a_loads()
    dma_p1()
    mphase(a,0,0,first=True,pend=9)
    a(f"{Lj0}:")
    st("M0")
    epi_z2(a,0)
    st("E0")
    mphase(a,0,1)
    a("s_waitcnt vmcnt(0)")
    st("M1")
    def after_b2():
        Lq=a.label("p1q"); Ld=a.label("p1d")
        a(f"s_cmp_ge_u32 s{S_CG}, 8")
        a(f"s_cbranch_scc1 {Lq}")
        a(f"s_add_u32 s{S_T2}, s{S_CG}, 28")
        a(f"s_lshl_b32 s{S_T2}, s{S_T2}, 7")
        dma_panel(a,'w',S_T2,0)
        a(f"s_branch {Ld}")
        a(f"{Lq}:")
        a(f"s_sub_u32 s{S_T2}, s{S_CG}, 8")
        a(f"s_lshl_b32 s{S_T2}, s{S_T2}, 7")
        dma_panel(a,'q',S_T2,0)
        a(f"{Ld}:")
    L=bar_if(a,1); after_b2(); a(f"{L}:")
    epi_z2(a,1)
    Lz=a.label("p1z2"); Lj=a.label("p1j")
    a(f"s_cmp_lt_u32 s{S_CG}, 4")
    a(f"s_cbranch_scc1 {Lz}")
    publish(a)
    a(f"{Lz}:")
    L=bar_if(a,0); after_b2(); a(f"{L}:")
    def after_b3():
        Ld=a.label("p1d")
        a(f"s_cmp_lt_u32 s{S_CG}, 20")
        a(f"s_cbranch_scc1 {Ld}")
        a(f"s_sub_u32 s{S_T2}, s{S_CG}, 20")
        a(f"s_lshr_b32 s{S_T2}, s{S_T2}, 2")
        a(f"s_add_u32 s{S_T2}, s{S_T2}, 24")
        a(f"s_lshl_b32 s{S_T2}, s{S_T2}, 7")
        dma_panel(a,'q',S_T2,1)
        a(f"{Ld}:")
    a(f"s_sub_u32 s{S_COL}, s{S_CG}, 4")
    a(f"s_lshl_b32 s{S_COL}, s{S_COL}, 6")
    st("E1B2")
    mphase(a,1,0)
    st("M2")
    Lz=a.label("p1z2"); Lj=a.label("p1j")
    a(f"s_cmp_lt_u32 s{S_CG}, 4")
    a(f"s_cbranch_scc1 {Lz}")
    epi_z1(a,0)
    a(f"s_branch {Lj}")
    a(f"{Lz}:")
    epi_z2(a,2)
    a(f"{Lj}:")
    st("E2")
    mphase(a,1,1)
    st("M3")
    a("s_waitcnt vmcnt(0)")
    st("M3w")
    Ls=a.label("p1s")
    a(f"s_cmp_lt_u32 s{S_CG}, 4")
    a(f"s_cbranch_scc1 {Ls}")
    signal(a)
    a(f"{Ls}:")
    L=bar_if(a,1); after_b3(); a(f"{L}:")
    Lz=a.label("p1z2"); Lj=a.label("p1j")
    a(f"s_cmp_lt_u32 s{S_CG}, 4")
    a(f"s_cbranch_scc1 {Lz}")
    epi_z1(a,1)
    a(f"s_branch {Lj}")
    a(f"{Lz}:")
    epi_z2(a,3)
    publish(a)
    a(f"{Lj}:")
    L=bar_if(a,0); after_b3(); a(f"{L}:")
    st("E3B3")
    Lv=a.label("p1v"); Lend2=a.label("p1e2")
    a(f"s_cmp_ge_u32 s{S_CG}, 26")
    a(f"s_cbranch_scc1 {Lv}")
    a(f"""
s_add_u32 s{S_T2}, s{S_CG}, 28
s_sub_u32 s{S_T3}, s{S_CG}, 8
s_cmp_lt_u32 s{S_CG}, 8
s_cselect_b32 s{S_COL}, s{S_T2}, s{S_T3}
s_sub_u32 s{S_T3}, s{S_CG}, 17
s_cmp_lt_u32 s{S_CG}, 17
s_cselect_b32 s{S_COL}, s{S_COL}, s{S_T3}
s_cselect_b32 s{S_SCALE}, {f32(QSCALE):#x}, 1.0
s_movk_i32 s{S_T3}, 2304
s_cselect_b32 s{S_T2}, 1152, s{S_T3}
s_mov_b32 s{S_T3}, {WS_KV}
s_cselect_b32 s{S_QKB}, {WS_QF}, s{S_T3}
s_lshl_b32 s{S_QKBLK}, s{S_T2}, 6
s_mul_i32 s{S_T2}, s{S_T2}, s{S_RB32}
s_add_u32 s{S_QKB}, s{S_QKB}, s{S_T2}
s_lshl_b32 s{S_COL}, s{S_COL}, 6
""")
    for tile in range(2):
        mphase(a,0,tile)
        if tile==0:
            Ls=a.label("p1s")
            a(f"s_cmp_ge_u32 s{S_CG}, 4")
            a(f"s_cbranch_scc1 {Ls}")
            a("s_waitcnt vmcnt(0)")
            signal(a)
            a(f"{Ls}:")
        else:
            a("s_waitcnt vmcnt(0)")
            L=bar_if(a,1); a(f"{L}:")
        Lq=a.label("p1qk"); Lj=a.label("p1j")
        a(f"s_cmp_ge_u32 s{S_CG}, 8")
        a(f"s_cbranch_scc1 {Lq}")
        epi_z1(a,tile)
        a(f"s_branch {Lj}")
        a(f"{Lq}:")
        epi_qk(a,tile)
        a(f"{Lj}:")
    a(f"s_branch {Lend2}")
    a(f"{Lv}:")
    a(f"s_sub_u32 s{S_COL}, s{S_CG}, 26")
    a(f"s_lshl_b32 s{S_COL}, s{S_COL}, 6")
    for tile in range(2):
        mphase(a,0,tile,normal=True)
        if tile==1:
            a("s_waitcnt vmcnt(0)")
            L=bar_if(a,1); a(f"{L}:")
        epi_v(a,tile)
    a(f"{Lend2}:")
    L=bar_if(a,0); a(f"{L}:")
    st("slot2")
    Lt=a.label("p1tail")
    a(f"""
s_cmp_lt_u32 s{S_CG}, 20
s_cbranch_scc1 {Lt}
s_sub_u32 s{S_T2}, s{S_CG}, 20
s_and_b32 s{S_T3}, s{S_T2}, 1
s_cmp_lg_u32 s{S_T3}, s{S_GRP}
s_cbranch_scc1 {Lt}
s_lshr_b32 s{S_T3}, s{S_T2}, 1
s_add_u32 s{S_COL}, s{S_T3}, 12
s_lshl_b32 s{S_COL}, s{S_COL}, 5
s_and_b32 s{S_T3}, s{S_T3}, 1
s_lshl_b32 s{S_T3}, s{S_T3}, 9
v_add_u32 v{V_T+2}, s{S_T3}, v{V_T+2}
v_add_u32 v{V_T+3}, s{S_T3}, v{V_T+3}
""")
    mphase(a,1,None,normal=True)
    epi_v(a,None)
    a(f"{Lt}:")
    t=V_TMP
    st("slot3")
    Lp=a.label("p1poll"); Lg=a.label("p1go")
    a(f"""
s_lshl_b32 s{S_T1}, s{S_RB32}, 7
s_add_u32 s{S_T1}, s{S_T1}, {WS_CNT}
v_mov_b32 v{t+1}, 0
s_mov_b32 s{S_T2}, 0x40000
{Lp}:
buffer_load_dword v{t}, v{t+1}, {s(S_WS,4)}, s{S_T1} offen sc1
s_waitcnt vmcnt(0)
v_readfirstlane_b32 s{S_T3}, v{t}
s_cmp_ge_u32 s{S_T3}, 32
s_cbranch_scc1 {Lg}
s_sleep 2
s_sub_u32 s{S_T2}, s{S_T2}, 1
s_cmp_lg_u32 s{S_T2}, 0
s_cbranch_scc1 {Lp}
{Lg}:
v_lshlrev_b32 v{t}, 4, v{V_LANE}
s_lshl_b32 s{S_T1}, s{S_RB32}, 13
s_add_u32 s{S_T1}, s{S_T1}, {WS_ST}
s_add_u32 s{S_T3}, s{S_T1}, 4096
""")
    for i in range(8):
        a(f"buffer_load_dwordx4 {v(V_A+4*i,4)}, v{t}, {s(S_WS,4)}, s{S_T1 if i<4 else S_T3} offen offset:{(i%4)*1024} sc1")
    a(f"""
s_lshl_b32 s{S_T2}, s{S_W}, 13
v_lshlrev_b32 v{t+2}, 2, v{V_N16}          ; n*64
v_lshl_add_u32 v{t+2}, v{V_HF8}, 1, v{t+2} ; + hf*16
v_add_u32 v{t+2}, s{S_T2}, v{t+2}
v_lshlrev_b32 v{t+3}, 6, v{V_HF8}
v_bfe_u32 v{t+4}, v{V_LANE}, 2, 2
v_lshl_add_u32 v{t+3}, v{t+4}, 6, v{t+3}
v_bfe_u32 v{t+4}, v{V_LANE}, 4, 1
v_lshl_add_u32 v{t+3}, v{t+4}, 5, v{t+3}
v_and_b32 v{t+4}, 3, v{V_LANE}
v_lshl_add_u32 v{t+3}, v{t+4}, 3, v{t+3}
v_add_u32 v{t+3}, s{S_T2}, v{t+3}
v_add_u32 v{t}, s{S_T2}, v{t}
v_lshrrev_b32 v{t+4}, 2, v{V_N16}
v_add_u32 v{t+4}, s{S_T2}, v{t+4}          ; n*4
""")
    for i in range(1,8):
        a(f"s_waitcnt vmcnt({7-i})")
        for j in range(4): a(f"v_add_f32 v{V_A+j}, v{V_A+j}, v{V_A+4*i+j}")
    a(f"ds_write_b128 v{t}, {v(V_A,4)}")
    a("s_waitcnt lgkmcnt(0)")
    for g in range(4):
        a(f"ds_read2_b32 {v(V_A+8+2*g,2)}, v{t+4} offset0:{g*64} offset1:{g*64+32}")
    a("s_waitcnt lgkmcnt(0)")
    a(f"v_add_f32 v{V_SUM}, v{V_A+8}, v{V_A+10}")
    a(f"v_add_f32 v{V_SQ}, v{V_A+9}, v{V_A+11}")
    a(f"v_add_f32 v{V_A+12}, v{V_A+12}, v{V_A+14}")
    a(f"v_add_f32 v{V_A+13}, v{V_A+13}, v{V_A+15}")
    a(f"v_add_f32 v{V_SUM}, v{V_SUM}, v{V_A+12}")
    a(f"v_add_f32 v{V_SQ}, v{V_SQ}, v{V_A+13}")
    a(f"""
v_mul_f32 v{V_SUM}, {f32(1.0/2304):#x}, v{V_SUM}      ; mean
v_mul_f32 v{V_SQ}, {f32(1.0/2304):#x}, v{V_SQ}
v_fma_f32 v{V_SQ}, -v{V_SUM}, v{V_SUM}, v{V_SQ}       ; var
v_max_f32 v{V_SQ}, 0, v{V_SQ}
v_cvt_pk_bf16_f32 v{V_SUM}, v{V_SUM}, v{V_SQ}
v_and_b32 v{V_SQ}, 0xffff0000, v{V_SUM}
v_lshlrev_b32 v{V_SUM}, 16, v{V_SUM}
v_add_f32 v{V_SQ}, {f32(1e-5):#x}, v{V_SQ}
v_cvt_pk_bf16_f32 v{V_SQ}, v{V_SQ}, v{V_SQ}
v_lshlrev_b32 v{V_SQ}, 16, v{V_SQ}
v_sqrt_f32 v{V_SQ}, v{V_SQ}
v_cvt_pk_bf16_f32 v{V_SQ}, v{V_SQ}, v{V_SQ}
v_lshlrev_b32 v{V_SQ}, 16, v{V_SQ}
v_rcp_f32 v{V_SQ}, v{V_SQ}                             ; rstd
v_mul_f32 v{V_SUM}, v{V_SUM}, v{V_SQ}
v_sub_f32 v{V_SUM}, 0, v{V_SUM}                        ; -mean*rstd
s_lshr_b32 s{S_T1}, s{S_RB32}, 1
s_mul_i32 s{S_T1}, s{S_T1}, 18432
s_add_u32 s{S_T1}, s{S_T1}, {WS_Z2N}
s_and_b32 s{S_T3}, s{S_RB32}, 1
""")
    def norm_tile(idx, fcol_s, fadd):
        d=V_PK+8*idx
        X=V_ACC
        for i in range(8):
            a(f"v_lshlrev_b32 v{X+2*i}, 16, v{d+i}")
            a(f"v_and_b32 v{X+2*i+1}, 0xffff0000, v{d+i}")
        for i in range(16): a(f"v_fma_f32 v{X+i}, v{X+i}, v{V_SQ}, v{V_SUM}")
        for i in range(8): a(f"v_cvt_pk_bf16_f32 v{d+i}, v{X+2*i}, v{X+2*i+1}")
        a(f"ds_write_b128 v{t+2}, {v(d,4)} offset:{idx*2048}")
        a(f"ds_write_b128 v{t+2}, {v(d+4,4)} offset:{idx*2048+32}")
        a(f"v_lshrrev_b32 v{t+4}, 4, v{V_N16}")
        a(f"v_add_u32 v{t+4}, s{fcol_s}, v{t+4}")
        if fadd: a(f"v_add_u32 v{t+4}, {fadd}, v{t+4}")
        a(f"v_mul_u32_u24 v{t+5}, 7282, v{t+4}")
        a(f"v_lshrrev_b32 v{t+5}, 20, v{t+5}")
        a(f"v_mul_u32_u24 v{t+6}, 144, v{t+5}")
        a(f"v_sub_u32 v{t+4}, v{t+4}, v{t+6}")
        a(f"v_mul_u32_u24 v{t+5}, {32*18432}, v{t+5}")
        a(f"v_and_b32 v{t+6}, 0x13, v{t+4}")
        a(f"v_and_b32 v{t+7}, 4, v{t+4}")
        a(f"v_lshl_add_u32 v{t+6}, v{t+7}, 1, v{t+6}")
        a(f"v_bfe_u32 v{t+7}, v{t+4}, 3, 1")
        a(f"v_lshl_add_u32 v{t+6}, v{t+7}, 2, v{t+6}")
        a(f"v_lshrrev_b32 v{t+7}, 5, v{t+4}")
        a(f"v_lshl_add_u32 v{t+6}, v{t+7}, 6, v{t+6}")
        a(f"v_lshl_add_u32 v{t+6}, v{V_HF8}, 2, v{t+6}")
        a(f"s_lshl_b32 s{S_T2}, s{S_T3}, 9")
        a(f"v_add_u32 v{t+6}, s{S_T2}, v{t+6}")
        a(f"v_add_u32 v{t+7}, 256, v{t+6}")
        a(f"s_lshl_b32 s{S_T2}, s{S_T3}, 6")
        a(f"s_add_u32 s{S_T2}, s{S_T2}, {1024-128}")
        a(f"v_lshl_add_u32 v{t+8}, v{V_HF8}, 1, v{t+4}")
        a(f"v_add_u32 v{t+8}, s{S_T2}, v{t+8}")
        a(f"v_add_u32 v{t+9}, 32, v{t+8}")
        a(f"v_cmp_lt_u32 vcc, 127, v{t+4}")
        a(f"v_cndmask_b32 v{t+6}, v{t+6}, v{t+8}, vcc")
        a(f"v_cndmask_b32 v{t+7}, v{t+7}, v{t+9}, vcc")
        a(f"v_lshl_add_u32 v{t+6}, v{t+6}, 4, v{t+5}")
        a(f"v_lshl_add_u32 v{t+7}, v{t+7}, 4, v{t+5}")
        a("s_waitcnt lgkmcnt(0)")
        for j in range(2):
            for rd in range(2):
                a(f"ds_read_b64_tr_b16 {v(V_B+4*j+2*rd,2)}, v{t+3} offset:{idx*2048 + j*1024 + rd*256}")
        a("s_waitcnt lgkmcnt(2)")
        a(f"buffer_store_dwordx4 {v(V_B,4)}, v{t+6}, {s(S_WS,4)}, s{S_T1} offen")
        a("s_waitcnt lgkmcnt(0)")
        a(f"buffer_store_dwordx4 {v(V_B+4,4)}, v{t+7}, {s(S_WS,4)}, s{S_T1} offen")
    st("stats")
    a(f"s_lshl_b32 s{S_COL}, s{S_CG}, 6")
    norm_tile(0,S_COL,0)
    norm_tile(1,S_COL,32)
    a(f"s_cmp_ge_u32 s{S_CG}, 4")
    a(f"s_cbranch_scc1 {END}")
    norm_tile(2,S_COL,2048)
    norm_tile(3,S_COL,2048+32)
    a(f"{END}:")
    st("norm")
    a("s_waitcnt vmcnt(0)")
    st("end")
    a(f"s_lshl_b32 s{S_T2}, s2, 3")
    a(f"s_add_u32 s{S_T2}, s{S_T2}, s{S_W}")
    st.dump(S_WS, S_T2, WS_DBG, V_TMP)
    a(f"{END}_x:")
    a("s_endpgm")
    return NV
```

```python
from asmlib import *
from layout import *
import os
LW=0; LZ=65536; LKV=139264; KVS=5120
LDS=LKV+4*KVS
S_WS=8; S_WSP=12; S_BSP=16
S_X=20; S_L=21; S_W=22; S_MB=23; S_NB=24; S_H=25; S_QB=26
S_T0=27; S_T1=28; S_T2=29; S_IT=30
S_SW=31; S_SZ=32; S_S5=33; S_I5=34; S_SKV=35; S_MW=36; S_MZ=37; S_M5=38
S_MKV=42; S_HOB=43; S_VM=44
S_T3=46
GPRIO=int(os.environ.get("GPRIO","1")); TPRIO=int(os.environ.get("TPRIO","3"))
NOG=os.environ.get("NOG","0")=="1"; NOT=os.environ.get("NOT","0")=="1"

def gen_g(a, st):
    V_L=1; V_DW=2; V_L16=4; V_W32=5; V_W16=9; V_Z=11; V_HO=13; V_HO16=14
    ACC=16; ACC16=80; FR=88; Z1=192; T=228
    a(f"""
; ---- G waves
v_lshrrev_b32 v{T}, 3, v{V_L}
v_lshlrev_b32 v{T}, 12, v{T}
v_and_b32 v{T+1}, 7, v{V_L}
v_lshrrev_b32 v{T+2}, 4, v{V_L}
v_xor_b32 v{T+1}, v{T+1}, v{T+2}
v_lshl_add_u32 v{V_DW}, v{T+1}, 4, v{T}
v_xor_b32 v{V_DW+1}, 64, v{V_DW}
v_lshlrev_b32 v{V_L16}, 4, v{V_L}
s_lshl_b32 s{S_T0}, s{S_MB}, 7
s_lshl_b32 s{S_T1}, s{S_W}, 5
s_add_u32 s{S_T0}, s{S_T0}, s{S_T1}          ; t0
s_lshl_b32 s{S_T1}, s{S_T0}, 1
v_and_b32 v{T+3}, 31, v{V_L}
v_lshlrev_b32 v{T+4}, 1, v{T+3}
v_and_b32 v{T+5}, 15, v{V_L}
v_lshlrev_b32 v{T+6}, 1, v{T+5}
buffer_load_ushort v{T+8}, v{T+4}, {s(S_BSP,4)}, s{S_T1} offen
buffer_load_ushort v{T+9}, v{T+6}, {s(S_BSP,4)}, s{S_T1} offen
buffer_load_ushort v{T+10}, v{T+6}, {s(S_BSP,4)}, s{S_T1} offen offset:32
s_lshl_b32 s{S_SW}, s{S_T0}, 12
s_mul_i32 s{S_SZ}, s{S_NB}, {32*18432}
s_add_u32 s{S_SZ}, s{S_SZ}, {WS_Z2N}
s_mul_i32 s{S_SKV}, s{S_H}, {64*2304}
s_add_u32 s{S_SKV}, s{S_SKV}, {WS_KV}
s_lshl_b32 s{S_T1}, s{S_W}, 10
s_add_u32 s{S_T2}, s{S_SZ}, 16384
s_add_u32 s{S_T2}, s{S_T2}, s{S_T1}
s_add_u32 s{S_T3}, s{S_SKV}, 4096
s_add_u32 s{S_SZ}, s{S_SZ}, s{S_T1}
s_add_u32 s{S_SKV}, s{S_SKV}, s{S_T1}
s_lshl_b32 s{S_MW}, s{S_W}, 12
s_add_u32 s{S_MZ}, s{S_T1}, {LZ}
s_add_u32 s{S_MKV}, s{S_T1}, {LKV}
s_add_u32 s{S_M5}, s{S_MZ}, 16384
s_movk_i32 s{S_I5}, 4608
s_mov_b32 s{S_M5+1}, {LKV+4096}
s_movk_i32 s{S_M5+2}, {KVS}
s_cmp_lt_u32 s{S_W}, 2
s_cselect_b32 s{S_S5}, s{S_T2}, s{S_T3}
s_cselect_b32 s{S_I5}, 18432, s{S_I5}
s_cselect_b32 s{S_M5}, s{S_M5}, s{S_M5+1}
s_cselect_b32 s{S_T2}, 18432, s{S_M5+2}
s_add_u32 s{S_M5+1}, s{S_M5}, s{S_T2}
s_add_u32 s{S_M5+2}, s{S_M5+1}, s{S_T2}
s_add_u32 s{S_M5+3}, s{S_M5+2}, s{S_T2}
""")
    def dma_list(stg):
        g=[]
        for i in range(4):
            g.append(f"s_add_u32 m0, s{S_MW}, {LW+stg*16384+i*1024}\ns_add_u32 s{S_T0}, s{S_SW}, {i*8*4096}\nbuffer_load_dwordx4 v{V_DW+(i&1)}, {s(S_WSP,4)}, s{S_T0} offen lds")
        for i in range(4):
            g.append(f"s_add_u32 m0, s{S_MZ}, {stg*18432+i*4096}\ns_add_u32 s{S_T0}, s{S_SZ}, {i*4096}\nbuffer_load_dwordx4 v{V_L16}, {s(S_WS,4)}, s{S_T0} offen lds")
        g.append(f"s_mov_b32 m0, s{S_M5+stg}\ns_add_u32 s{S_SW}, s{S_SW}, 128\nbuffer_load_dwordx4 v{V_L16}, {s(S_WS,4)}, s{S_S5} offen lds\ns_add_u32 s{S_S5}, s{S_S5}, s{S_I5}")
        g.append(f"s_add_u32 m0, s{S_MKV}, {stg*KVS}\ns_add_u32 s{S_SZ}, s{S_SZ}, 18432\nbuffer_load_dwordx4 v{V_L16}, {s(S_WS,4)}, s{S_SKV} offen lds\ns_add_u32 s{S_SKV}, s{S_SKV}, 4608")
        return g
    for stg in range(3):
        for g in dma_list(stg): a(g)
    a(f"""
s_lshl_b32 s{S_T1}, s{S_W}, 12
v_lshlrev_b32 v{T}, 7, v{T+3}                ; t*128
v_add_u32 v{T}, s{S_T1}, v{T}
v_bfe_u32 v{T+1}, v{V_L}, 1, 3               ; f(t)
v_lshrrev_b32 v{T+2}, 5, v{V_L}              ; hf
v_xor_b32 v{T+1}, v{T+1}, v{T+2}
v_lshl_add_u32 v{V_W32}, v{T+1}, 4, v{T}
v_xor_b32 v{V_W32+1}, 32, v{V_W32}
v_xor_b32 v{V_W32+2}, 64, v{V_W32}
v_xor_b32 v{V_W32+3}, 96, v{V_W32}
v_lshlrev_b32 v{T}, 7, v{T+5}                ; r*128
v_add_u32 v{T}, s{S_T1}, v{T}
v_bfe_u32 v{T+1}, v{V_L}, 1, 3
v_lshrrev_b32 v{T+7}, 4, v{V_L}              ; g
v_xor_b32 v{T+1}, v{T+1}, v{T+7}
v_lshl_add_u32 v{V_W16}, v{T+1}, 4, v{T}
v_xor_b32 v{V_W16+1}, 64, v{V_W16}
v_add_u32 v{V_Z}, {LZ}, v{V_L16}
v_add_u32 v{V_Z+1}, {LZ+36864}, v{V_L16}
v_lshrrev_b32 v{T}, 4, v{T+3}
v_mul_u32_u24 v{T}, 92160, v{T}
v_lshl_add_u32 v{T}, v{T+5}, 4, v{T}
v_lshl_add_u32 v{V_HO}, v{T+2}, 8, v{T}
v_lshlrev_b32 v{T}, 4, v{T+5}
v_lshl_add_u32 v{T}, v{T+2}, 8, v{T}         ; + (g>>1)*256
v_and_b32 v{T+1}, 1, v{T+7}
v_lshl_add_u32 v{T}, v{T+1}, 3, v{T}
v_add_u32 v{V_HO16}, 4096, v{T}
v_add_u32 v{V_HO16+1}, {4096+92160}, v{T}
s_lshl_b32 s{S_HOB}, s{S_MB}, 2
s_add_u32 s{S_HOB}, s{S_HOB}, s{S_W}
s_mul_i32 s{S_HOB}, s{S_HOB}, {2*92160}
s_mul_i32 s{S_T1}, s{S_NB}, 4608
s_add_u32 s{S_HOB}, s{S_HOB}, s{S_T1}
s_add_u32 s{S_HOB}, s{S_HOB}, {WS_HO}
s_waitcnt vmcnt(30)
v_lshlrev_b32 v{T+8}, 16, v{T+8}
v_lshlrev_b32 v{T+9}, 16, v{T+9}
v_lshlrev_b32 v{T+10}, 16, v{T+10}
""")
    for i in range(64): a(f"v_mov_b32 v{ACC+i}, v{T+8}")
    for i in range(8): a(f"v_mov_b32 v{ACC16+i}, v{T+9+i//4}")
    def reads(stg, kk):
        b=FR+52*kk; r=[]
        zb=V_Z+(stg>>1); zo=(stg&1)*18432
        for q in range(2):
            ks=2*kk+q
            r.append(f"ds_read_b128 {v(b+32+4*q,4)}, v{V_W32+ks} offset:{LW+stg*16384}")
            for ft in range(4):
                r.append(f"ds_read_b128 {v(b+16*q+4*ft,4)}, v{zb} offset:{zo+(ks*4+ft)*1024}")
        r.append(f"ds_read_b128 {v(b+40,4)}, v{zb} offset:{zo+16384+kk*1024}")
        for tt in range(2):
            r.append(f"ds_read_b128 {v(b+44+4*tt,4)}, v{V_W16+kk} offset:{LW+stg*16384+tt*2048}")
        return r
    def mfmas(kk):
        b=FR+52*kk; m=[]
        for q in range(2):
            for ft in range(4):
                ac=v(ACC+16*ft,16)
                m.append(f"v_mfma_f32_32x32x16_bf16 {ac}, {v(b+16*q+4*ft,4)}, {v(b+32+4*q,4)}, {ac}")
            ac=v(ACC16+4*q,4)
            m.append(f"v_mfma_f32_16x16x32_bf16 {ac}, {v(b+40,4)}, {v(b+44+4*q,4)}, {ac}")
        return m
    a("s_waitcnt vmcnt(20)")
    st("Gpro")
    a("s_barrier")
    a(f"s_setprio {GPRIO}")
    for r in reads(0,0): a(r)
    def half(kk, rds, dm):
        a("s_waitcnt lgkmcnt(0)")
        ms=mfmas(kk); rds=list(rds); dm=list(dm)
        for i,m in enumerate(ms):
            if not NOG: a(m)
            for _ in range(2):
                if rds: a(rds.pop(0))
            if i%2==1 and dm: a(dm.pop(0))
        assert not rds and not dm
    def iteration(stg, dma, wait, last=False, extra=None):
        a(f"s_waitcnt vmcnt({wait})")
        a("s_barrier")
        d = dma_list((stg+3)%4) if dma else (extra or [])
        half(0, reads(stg,1), d[:5])
        half(1, [] if last else reads((stg+1)%4,0), d[5:])
    Lp=a.label("g_loop")
    a(f"s_mov_b32 s{S_IT}, 7")
    a(f"{Lp}:")
    for stg in range(4): iteration(stg, True, 10)
    a(f"s_sub_u32 s{S_IT}, s{S_IT}, 1")
    a(f"s_cmp_lg_u32 s{S_IT}, 0")
    a(f"s_cbranch_scc1 {Lp}")
    z1=[]
    for ft in range(4):
        for u in range(2):
            z1.append(f"buffer_load_dwordx4 {v(Z1+8*ft+4*u,4)}, v{V_HO}, {s(S_WS,4)}, s{S_HOB} offen offset:{ft*1024+u*512}")
    for tt in range(2):
        z1.append(f"buffer_load_dwordx2 {v(Z1+32+2*tt,2)}, v{V_HO16+tt}, {s(S_WS,4)}, s{S_HOB} offen")
    iteration(0, True, 10)
    iteration(1, False, 10, extra=z1)
    iteration(2, False, 10)
    iteration(3, False, 10, last=True)
    st("Gloop")
    a("s_nop 7")
    a("s_waitcnt vmcnt(0)")
    def mulpack(acc, z, n):
        for i in range(n):
            a(f"v_lshlrev_b32 v{T+2*(i%4)}, 16, v{z+i}")
            a(f"v_and_b32 v{T+2*(i%4)+1}, 0xffff0000, v{z+i}")
            a(f"v_mul_f32 v{acc+2*i}, v{acc+2*i}, v{T+2*(i%4)}")
            a(f"v_mul_f32 v{acc+2*i+1}, v{acc+2*i+1}, v{T+2*(i%4)+1}")
            a(f"v_cvt_pk_bf16_f32 v{z+i}, v{acc+2*i}, v{acc+2*i+1}")
    for ft in range(4):
        for u in range(2):
            mulpack(ACC+16*ft+8*u, Z1+8*ft+4*u, 4)
            a(f"buffer_store_dwordx4 {v(Z1+8*ft+4*u,4)}, v{V_HO}, {s(S_WS,4)}, s{S_HOB} offen offset:{ft*1024+u*512}")
    for tt in range(2):
        mulpack(ACC16+4*tt, Z1+32+2*tt, 2)
        a(f"buffer_store_dwordx2 {v(Z1+32+2*tt,2)}, v{V_HO16+tt}, {s(S_WS,4)}, s{S_HOB} offen")
    st("Gend")

def gen_t(a, st):
    V_L=1; V_L16=2; V_K1=3; V_K2=4; V_V=5; V_N=6; V_HF=7; V_GK2=8; V_GV=9; T=10
    S=16; P=48; O=64; NM=96; Q=128; K=144; V=160
    a(f"""
; ---- T waves
s_sub_u32 s{S_T0}, s{S_W}, 4
s_lshl_b32 s{S_T0}, s{S_T0}, 1
s_lshl_b32 s{S_QB}, s{S_QB}, 3
s_add_u32 s{S_QB}, s{S_QB}, s{S_T0}
s_lshl_b32 s{S_T0}, s{S_H}, 6
s_add_u32 s{S_T0}, s{S_T0}, s{S_QB}
s_mul_i32 s{S_T0}, s{S_T0}, 1152
s_add_u32 s{S_T0}, s{S_T0}, {WS_QF}
v_lshlrev_b32 v{V_L16}, 4, v{V_L}
v_and_b32 v{V_N}, 31, v{V_L}
v_lshrrev_b32 v{V_HF}, 5, v{V_L}
v_lshlrev_b32 v{V_GK2}, 2, v{V_N}
v_add_u32 v{V_GK2}, 1024, v{V_GK2}
buffer_load_dwordx4 {v(Q,4)}, v{V_L16}, {s(S_WS,4)}, s{S_T0} offen
buffer_load_dword v{Q+4}, v{V_GK2}, {s(S_WS,4)}, s{S_T0} offen
buffer_load_dwordx4 {v(Q+8,4)}, v{V_L16}, {s(S_WS,4)}, s{S_T0} offen offset:1152
buffer_load_dword v{Q+12}, v{V_GK2}, {s(S_WS,4)}, s{S_T0} offen offset:1152
v_add_u32 v{V_K1}, {LKV}, v{V_L16}
v_add_u32 v{V_K2}, {LKV}, v{V_GK2}
v_mul_u32_u24 v{V_GV}, 18, v{V_HF}
v_add_u32 v{V_GV}, v{V_GV}, v{V_N}
v_lshlrev_b32 v{V_GV}, 4, v{V_GV}
v_add_u32 v{V_GV}, 1152, v{V_GV}
v_add_u32 v{V_V}, {LKV}, v{V_GV}
s_mov_b32 s{S_VM}, 0x3ffff
s_mov_b32 s{S_VM+1}, 0x3ffff
""")
    for r in (Q+5,Q+6,Q+7,Q+13,Q+14,Q+15, K+5,K+6,K+7,K+13,K+14,K+15): a(f"v_mov_b32 v{r}, 0")
    for i in range(16): a(f"v_mov_b32 v{V+i}, 0x3f803f80")
    for i in range(32): a(f"v_mov_b32 v{O+i}, 0")
    for i in range(8): a(f"v_mov_b32 v{P+8+i}, 0")
    a(f"""
v_cmp_gt_u32 vcc, 32, v{V_L}
s_waitcnt vmcnt(0)
v_cndmask_b32 v{Q+4}, 0, v{Q+4}, vcc
v_cndmask_b32 v{Q+12}, 0, v{Q+12}, vcc
""")
    st("Tpro")
    a("s_barrier")
    def rdK(buf, off):
        return [f"ds_read_b128 {v(K+8*buf,4)}, v{V_K1} offset:{off}", f"ds_read_b32 v{K+8*buf+4}, v{V_K2} offset:{off}"]
    def rdV(buf, off):
        return [f"s_mov_b64 exec, {s(S_VM,2)}\nds_read_b128 {v(V+8*buf,4)}, v{V_V} offset:{off}\nds_read_b128 {v(V+8*buf+4,4)}, v{V_V} offset:{off+576}\ns_mov_b64 exec, -1"]
    def qk(sb, kb, qa, c):
        d=v(S+16*sb,16)
        return [f"v_mfma_f32_32x32x16_bf16 {d}, {v(K+8*kb,4)}, {v(Q+8*qa,4)}, {c}",
                f"v_mfma_f32_32x32x16_bf16 {d}, {v(K+8*kb+4,4)}, {v(Q+8*qa+4,4)}, {d}"]
    def pv(oa, vb, pb):
        d=v(O+16*oa,16)
        return [f"v_mfma_f32_32x32x16_bf16 {d}, {v(V+8*vb,4)}, {v(P+8*pb,4)}, {d}",
                f"v_mfma_f32_32x32x16_bf16 {d}, {v(V+8*vb+4,4)}, {v(P+8*pb+4,4)}, {d}"]
    def rowmax(sb, m, init):
        b=S+16*sb
        if init:
            a(f"v_max3_f32 v{m}, v{b}, v{b+1}, v{b+2}")
            a(f"v_max_f32 v{m}, v{m}, v{b+3}")
            for i in range(4,16,2): a(f"v_max3_f32 v{m}, v{m}, v{b+i}, v{b+i+1}")
        else:
            for i in range(0,16,2): a(f"v_max3_f32 v{m}, v{m}, v{b+i}, v{b+i+1}")
    def set_negm():
        for qa in range(2):
            m=T+qa
            a(f"v_mov_b32 v{T+2}, v{m}")
            a(f"v_permlane32_swap_b32 v{T+2}, v{m}")
            a(f"v_max_f32 v{m}, v{m}, v{T+2}")
            a(f"v_sub_f32 v{m}, 0, v{m}")
            for i in range(16): a(f"v_mov_b32 v{NM+16*qa+i}, v{m}")
    for r in rdK(0,0): a(r)
    a("s_waitcnt lgkmcnt(0)")
    for qa in range(2):
        for m in qk(qa,0,qa,"0"): a(m)
    for qa in range(2): rowmax(qa, T+qa, True)
    set_negm()
    for m in qk(0,0,0,v(NM,16)): a(m)
    a("s_nop 7\ns_nop 3")
    def block(u, pre=[]):
        aa=u&1; j=u>>1
        if aa==0: ms = qk(1, j&1, 1, v(NM+16,16)) + pv(1, (j-1)&1, 1)
        else:     ms = qk(0, (j+1)&1, 0, v(NM,16)) + pv(0, j&1, 0)
        sb=S+16*aa; pb=P+8*aa
        for x in pre: a(x)
        for i in range(4):
            if not NOT:
                a(f"s_setprio {TPRIO}")
                a(ms[i])
                a("s_setprio 0")
                for e in range(4): a(f"v_exp_f32 v{sb+4*i+e}, v{sb+4*i+e}")
                a(f"v_cvt_pk_bf16_f32 v{pb+2*i}, v{sb+4*i}, v{sb+4*i+1}")
                a(f"v_cvt_pk_bf16_f32 v{pb+2*i+1}, v{sb+4*i+2}, v{sb+4*i+3}")
    Lp=a.label("t_loop")
    a(f"s_mov_b32 s{S_IT}, 8")
    a(f"{Lp}:")
    for stg in range(4):
        o=stg*KVS; on=((stg+1)%4)*KVS
        a("s_barrier")
        block(0, rdK(1,o+2304)+rdV(0,o))
        block(1, ["s_waitcnt lgkmcnt(0)"])
        block(2, rdK(0,on)+rdV(1,o+2304))
        block(3, ["s_waitcnt lgkmcnt(0)"])
    a(f"s_sub_u32 s{S_IT}, s{S_IT}, 1")
    a(f"s_cmp_lg_u32 s{S_IT}, 0")
    a(f"s_cbranch_scc1 {Lp}")
    for m in pv(1,1,1): a(m)
    st("Tloop")
    a("s_nop 7\ns_nop 3")
    Lfb=a.label("t_fb"); Lep=a.label("t_ep")
    a(f"""
s_mov_b32 s{S_T0}, 0x4e800000
v_cmp_nlt_f32 vcc, v{O+12}, s{S_T0}
v_cmp_nlt_f32 s[{S_VM+4}:{S_VM+5}], v{O+28}, s{S_T0}
s_or_b64 vcc, vcc, s[{S_VM+4}:{S_VM+5}]
s_cmp_lg_u64 vcc, 0
s_cbranch_scc1 {Lfb}
{Lep}:
""")
    a(f"""
s_mul_i32 s{S_T0}, s{S_H}, 18
v_lshlrev_b32 v{T}, 2, v{V_HF}
v_add_u32 v{T}, s{S_T0}, v{T}                ; c0 = 18h+4hf
v_lshrrev_b32 v{T+1}, 4, v{V_N}
v_mul_u32_u24 v{T+1}, 92160, v{T+1}
v_and_b32 v{T+2}, 15, v{V_N}
v_lshl_add_u32 v{T+1}, v{T+2}, 4, v{T+1}
s_mul_i32 s{S_T1}, s{S_QB}, {2*92160}
s_add_u32 s{S_T1}, s{S_T1}, {WS_HO+288*256}
s_add_u32 s{S_T2}, s{S_T1}, {2*92160}
""")
    for i,dc in enumerate((0,2,8,10,16)):
        a(f"v_add_u32 v{T+2}, {dc}, v{T}")
        a(f"v_lshrrev_b32 v{T+3}, 3, v{T+2}")
        a(f"v_lshl_add_u32 v{T+3}, v{T+3}, 8, v{T+1}")
        a(f"v_and_b32 v{T+2}, 7, v{T+2}")
        a(f"v_lshl_add_u32 v{S+i}, v{T+2}, 1, v{T+3}")
    for qa in range(2):
        o=O+16*qa
        a(f"v_rcp_f32 v{T+4}, v{o+12}")
        for i in range(10): a(f"v_mul_f32 v{o+i}, v{o+i}, v{T+4}")
        for i in range(5): a(f"v_cvt_pk_bf16_f32 v{P+8*qa+i}, v{o+2*i}, v{o+2*i+1}")
        for i in range(4): a(f"buffer_store_dword v{P+8*qa+i}, v{S+i}, {s(S_WS,4)}, s{S_T1+qa} offen")
    a("s_mov_b64 exec, 0xffffffff")
    for qa in range(2): a(f"buffer_store_dword v{P+8*qa+4}, v{S+4}, {s(S_WS,4)}, s{S_T1+qa} offen")
    a("s_mov_b64 exec, -1")
    st("Tend")
    Lend=a.label("t_end")
    a(f"s_branch {Lend}")
    a(f"{Lfb}:")
    a(f"s_mul_i32 s{S_T0}, s{S_H}, {64*2304}")
    a(f"s_add_u32 s{S_T0}, s{S_T0}, {WS_KV}")
    a(f"s_mov_b32 s{S_T1}, s{S_T0}")
    a(f"s_mov_b32 s{S_IT}, 64")
    a(f"v_mov_b32 v{T}, 0xff800000")
    a(f"v_mov_b32 v{T+1}, 0xff800000")
    L1=a.label("t_fb1"); L2=a.label("t_fb2")
    a(f"{L1}:")
    a(f"buffer_load_dwordx4 {v(K,4)}, v{V_L16}, {s(S_WS,4)}, s{S_T1} offen")
    a(f"buffer_load_dword v{K+4}, v{V_GK2}, {s(S_WS,4)}, s{S_T1} offen")
    a("s_waitcnt vmcnt(0)")
    for qa in range(2):
        for m in qk(qa,0,qa,"0"): a(m)
    for qa in range(2): rowmax(qa, T+qa, False)
    a(f"s_add_u32 s{S_T1}, s{S_T1}, 2304")
    a(f"s_sub_u32 s{S_IT}, s{S_IT}, 1")
    a(f"s_cmp_lg_u32 s{S_IT}, 0")
    a(f"s_cbranch_scc1 {L1}")
    set_negm()
    for i in range(32): a(f"v_mov_b32 v{O+i}, 0")
    a(f"s_mov_b32 s{S_T1}, s{S_T0}")
    a(f"s_mov_b32 s{S_IT}, 64")
    a(f"{L2}:")
    a(f"buffer_load_dwordx4 {v(K,4)}, v{V_L16}, {s(S_WS,4)}, s{S_T1} offen")
    a(f"buffer_load_dword v{K+4}, v{V_GK2}, {s(S_WS,4)}, s{S_T1} offen")
    a(f"s_mov_b64 exec, {s(S_VM,2)}")
    a(f"buffer_load_dwordx4 {v(V,4)}, v{V_GV}, {s(S_WS,4)}, s{S_T1} offen")
    a(f"buffer_load_dwordx4 {v(V+4,4)}, v{V_GV}, {s(S_WS,4)}, s{S_T1} offen offset:576")
    a("s_mov_b64 exec, -1")
    a("s_waitcnt vmcnt(0)")
    for qa in range(2):
        for m in qk(qa,0,qa,v(NM+16*qa,16)): a(m)
    for qa in range(2):
        sb=S+16*qa; pb=P+8*qa
        for e in range(16): a(f"v_exp_f32 v{sb+e}, v{sb+e}")
        for e in range(8): a(f"v_cvt_pk_bf16_f32 v{pb+e}, v{sb+2*e}, v{sb+2*e+1}")
        for m in pv(qa,0,qa): a(m)
    a(f"s_add_u32 s{S_T1}, s{S_T1}, 2304")
    a(f"s_sub_u32 s{S_IT}, s{S_IT}, 1")
    a(f"s_cmp_lg_u32 s{S_IT}, 0")
    a(f"s_cbranch_scc1 {L2}")
    a("s_nop 7\ns_nop 3")
    a(f"s_branch {Lep}")
    a(f"{Lend}:")

def gen_p2(a, name="p2_kernel"):
    kernel_begin(a, name)
    END=f"{name}_end"; LT=f"{name}_t"
    st=Stamper(a)
    a(f"""
s_cmp_ge_u32 s2, 256
s_cbranch_scc1 {END}_x
""")
    st("start")
    a(f"""
s_load_dwordx2 s[4:5], s[0:1], {KA_WS}
s_load_dwordx4 s[48:51], s[0:1], {KA_WSP}
s_and_b32 s{S_X}, s2, 7
s_lshr_b32 s{S_L}, s2, 3
s_lshr_b32 s{S_T0}, s{S_L}, 3
s_lshr_b32 s{S_MB}, s{S_X}, 1
s_lshl_b32 s{S_MB}, s{S_MB}, 2
s_add_u32 s{S_MB}, s{S_MB}, s{S_T0}
s_and_b32 s{S_QB}, s{S_L}, 7
s_and_b32 s{S_NB}, s{S_X}, 1
s_lshl_b32 s{S_NB}, s{S_NB}, 3
s_add_u32 s{S_NB}, s{S_NB}, s{S_QB}
s_lshl_b32 s{S_H}, s{S_X}, 2
s_add_u32 s{S_H}, s{S_H}, s{S_T0}
v_lshrrev_b32 v1, 6, v0
v_readfirstlane_b32 s{S_W}, v1
v_and_b32 v1, 63, v0
s_waitcnt lgkmcnt(0)
""")
    srd(a, S_WS, 4, WS_END)
    srd(a, S_WSP, 48, 2048*4096)
    srd(a, S_BSP, 50, 4096)
    a(f"s_cmp_ge_u32 s{S_W}, 4")
    a(f"s_cbranch_scc1 {LT}")
    n0=st.n
    gen_g(a, st)
    a(f"s_branch {END}")
    a(f"{LT}:")
    st.n=n0
    gen_t(a, st)
    a(f"{END}:")
    if STAMP:
        a("s_waitcnt vmcnt(0)")
        st("end")
        a(f"s_lshl_b32 s{S_T2}, s2, 3")
        a(f"s_add_u32 s{S_T2}, s{S_T2}, s{S_W}")
        st.dump(S_WS, S_T2, WS_DBG+262144, 10)
    a(f"{END}_x:")
    a("s_endpgm")
    return 244
```

```python
from asmlib import *
from layout import *
import math
PART=18432
LDS=5*PART
S_WS=8; S_X=12; S_OUT=16
S_W=20; S_RB=21; S_CB=22; S_SH=23; S_SWF=24; S_T0=25; S_T1=26; S_T2=27
def gen_p3(a, name="p3_kernel"):
    kernel_begin(a, name)
    END=f"{name}_end"
    V_L=1; V_L16=2; V_HALF=3; V_LD=4; V_LDH=5; T=6
    ACC=16; FR=96
    st=Stamper(a)
    a(f"""
s_cmp_ge_u32 s2, 256
s_cbranch_scc1 {END}_x
""")
    st("start")
    a(f"""
s_load_dwordx2 s[4:5], s[0:1], {KA_WS}
s_load_dwordx2 s[6:7], s[0:1], {KA_X}
s_load_dwordx2 s[28:29], s[0:1], {KA_OUT}
s_and_b32 s{S_T0}, s2, 7
s_lshr_b32 s{S_T1}, s2, 3
s_lshr_b32 s{S_RB}, s{S_T0}, 1
s_lshl_b32 s{S_RB}, s{S_RB}, 3
s_lshr_b32 s{S_T2}, s{S_T1}, 2
s_add_u32 s{S_RB}, s{S_RB}, s{S_T2}
s_and_b32 s{S_CB}, s{S_T0}, 1
s_lshl_b32 s{S_CB}, s{S_CB}, 2
s_and_b32 s{S_T2}, s{S_T1}, 3
s_add_u32 s{S_CB}, s{S_CB}, s{S_T2}
v_lshrrev_b32 v1, 6, v0
v_readfirstlane_b32 s{S_W}, v1
v_and_b32 v{V_L}, 63, v0
v_lshlrev_b32 v{V_L16}, 4, v{V_L}
v_and_b32 v{T}, 15, v{V_L}
v_lshrrev_b32 v{T+1}, 4, v{V_L}
v_lshlrev_b32 v{T+2}, 4, v{T}
v_lshl_add_u32 v{T+2}, v{T+1}, 7, v{T+2}
v_add_u32 v{T+2}, 4096, v{T+2}
v_mov_b32 v{T+3}, 0x7f000000
v_cmp_gt_u32 vcc, 8, v{T}
v_cndmask_b32 v{V_HALF}, v{T+3}, v{T+2}, vcc
s_mul_i32 s{S_SH}, s{S_RB}, {4*92160}
s_mul_i32 s{S_T0}, s{S_W}, {9*1024}
s_add_u32 s{S_SH}, s{S_SH}, s{S_T0}
s_add_u32 s{S_SH}, s{S_SH}, {WS_HO}
s_mul_i32 s{S_SWF}, s{S_CB}, {90*4608}
s_mul_i32 s{S_T0}, s{S_W}, {9*4608}
s_add_u32 s{S_SWF}, s{S_SWF}, s{S_T0}
s_add_u32 s{S_SWF}, s{S_SWF}, {WS_WF}
s_waitcnt lgkmcnt(0)
""")
    srd(a, S_WS, 4, WS_END)
    srd(a, S_X, 6, 2048*1152)
    srd(a, S_OUT, 28, 2048*1152)
    def loads(ks):
        b=FR+36*(ks&1)
        for fr in range(4):
            a(f"buffer_load_dwordx4 {v(b+16+4*fr,4)}, v{V_L16}, {s(S_WS,4)}, s{S_SWF} offen offset:{fr*1024}")
        a(f"buffer_load_dwordx4 {v(b+32,4)}, v{V_HALF}, {s(S_WS,4)}, s{S_SWF} offen")
        for tt in range(4):
            if tt: a(f"s_add_u32 s{S_T0}, s{S_SH}, {tt*92160}")
            a(f"buffer_load_dwordx4 {v(b+4*tt,4)}, v{V_L16}, {s(S_WS,4)}, s{S_T0 if tt else S_SH} offen")
        a(f"s_add_u32 s{S_SH}, s{S_SH}, 1024")
        a(f"s_add_u32 s{S_SWF}, s{S_SWF}, 4608")
    loads(0); loads(1)
    for ks in range(9):
        a(f"s_waitcnt vmcnt({9 if ks<8 else 0})")
        b=FR+36*(ks&1)
        for tt in range(4):
            for fr in range(5):
                ac=v(ACC+4*(tt*5+fr),4)
                a(f"v_mfma_f32_16x16x32_bf16 {ac}, {v(b+16+4*fr,4)}, {v(b+4*tt,4)}, {'0' if ks==0 else ac}")
        if ks+2<9: loads(ks+2)
    st("loop")
    a(f"""
s_and_b32 s{S_T0}, s{S_W}, 3
s_cmp_ge_u32 s{S_W}, 8
s_cselect_b32 s{S_T0}, 4, s{S_T0}
s_mul_i32 s{S_T0}, s{S_T0}, {PART}
v_add_u32 v{V_LD}, s{S_T0}, v{V_L16}
s_lshr_b32 s{S_T1}, s{S_W}, 2
s_and_b32 s{S_T2}, s{S_W}, 1
s_cmp_eq_u32 s{S_T1}, 2
s_cselect_b32 s{S_T1}, s{S_T2}, s{S_T1}
s_nop 7
""")
    def wr():
        for tt in range(4):
            for fr in range(4):
                a(f"ds_write_b128 v{V_LD}, {v(ACC+4*(tt*5+fr),4)} offset:{tt*4608+fr*1024}")
        a("s_mov_b64 exec, 0xffffffff")
        for tt in range(4):
            a(f"ds_write_b128 v{V_LD}, {v(ACC+4*(tt*5+4),4)} offset:{tt*4608+4096}")
        a("s_mov_b64 exec, -1")
    Lr=a.label("p3r"); Lj=a.label("p3j")
    a(f"s_cmp_eq_u32 s{S_T1}, 0")
    a(f"s_cbranch_scc1 {Lr}")
    wr()
    a("s_waitcnt lgkmcnt(0)")
    a("s_barrier")
    a(f"s_branch {Lj}")
    a(f"{Lr}:")
    a("s_barrier")
    for half in range(2):
        for i in range(10):
            tt=(half*10+i)//5; fr=(half*10+i)%5
            a(f"ds_read_b128 {v(FR+4*i,4)}, v{V_LD} offset:{tt*4608+fr*1024}")
        for i in range(10):
            a(f"s_waitcnt lgkmcnt({9-i})")
            for j in range(4):
                r=ACC+4*(half*10+i)+j
                a(f"v_add_f32 v{r}, v{r}, v{FR+4*i+j}")
    wr()
    a("s_waitcnt lgkmcnt(0)")
    a(f"{Lj}:")
    a("s_barrier")
    st("red")
    X=12
    a(f"""
v_cmp_gt_u32 vcc, 576, v0
s_and_saveexec_b64 s[30:31], vcc
s_cbranch_execz {END}
v_mul_u32_u24 v{T}, 7282, v0
v_lshrrev_b32 v{T}, 16, v{T}              ; t = tid/9
v_mul_u32_u24 v{T+1}, 9, v{T}
v_sub_u32 v{T+1}, v0, v{T+1}              ; d8
v_mul_u32_u24 v{T+2}, 1152, v{T}
v_lshl_add_u32 v{T+2}, v{T+1}, 4, v{T+2}
s_mul_i32 s{S_T0}, s{S_RB}, {64*1152}
s_mul_i32 s{S_T1}, s{S_CB}, 144
s_add_u32 s{S_T0}, s{S_T0}, s{S_T1}
buffer_load_dwordx4 {v(X,4)}, v{T+2}, {s(S_X,4)}, s{S_T0} offen
v_lshrrev_b32 v{T+3}, 4, v{T}
v_mul_u32_u24 v{T+3}, 4608, v{T+3}
v_lshl_add_u32 v{T+3}, v{T+1}, 9, v{T+3}
v_and_b32 v{T+4}, 15, v{T}
v_lshl_add_u32 v{T+3}, v{T+4}, 4, v{T+3}
v_add_u32 v{T+4}, {2*PART}, v{T+3}
""")
    for p in range(5):
        base=T+3 if p<2 else T+4; off=(p if p<2 else p-2)*PART
        a(f"ds_read_b128 {v(ACC+8*p,4)}, v{base} offset:{off}")
        a(f"ds_read_b128 {v(ACC+8*p+4,4)}, v{base} offset:{off+256}")
    a("s_waitcnt lgkmcnt(0)")
    B=ACC; Sg=ACC+32; U=ACC+48
    for i in range(8):
        a(f"v_add_f32 v{B+i}, v{B+i}, v{B+8+i}")
        a(f"v_add_f32 v{B+16+i}, v{B+16+i}, v{B+24+i}")
    for i in range(8): a(f"v_add_f32 v{B+i}, v{B+i}, v{B+16+i}")
    def rnd(base):
        for i in range(4): a(f"v_cvt_pk_bf16_f32 v{U+i}, v{base+2*i}, v{base+2*i+1}")
        for i in range(4):
            a(f"v_lshlrev_b32 v{base+2*i}, 16, v{U+i}")
            a(f"v_and_b32 v{base+2*i+1}, 0xffff0000, v{U+i}")
    rnd(B); rnd(Sg)
    E=B+8
    for i in range(8): a(f"v_mul_f32 v{E+i}, {f32(-math.log2(math.e)):#x}, v{B+i}")
    for i in range(8): a(f"v_exp_f32 v{E+i}, v{E+i}")
    for i in range(8): a(f"v_add_f32 v{E+i}, 1.0, v{E+i}")
    for i in range(8): a(f"v_rcp_f32 v{E+i}, v{E+i}")
    for i in range(8): a(f"v_mul_f32 v{B+i}, v{B+i}, v{E+i}")
    rnd(B)
    for i in range(8): a(f"v_mul_f32 v{B+i}, v{B+i}, v{Sg+i}")
    rnd(B)
    a("s_waitcnt vmcnt(0)")
    for i in range(4):
        a(f"v_lshlrev_b32 v{E+2*i}, 16, v{X+i}")
        a(f"v_and_b32 v{E+2*i+1}, 0xffff0000, v{X+i}")
    for i in range(8): a(f"v_add_f32 v{B+i}, v{B+i}, v{E+i}")
    for i in range(4): a(f"v_cvt_pk_bf16_f32 v{U+i}, v{B+2*i}, v{B+2*i+1}")
    a(f"buffer_store_dwordx4 {v(U,4)}, v{T+2}, {s(S_OUT,4)}, s{S_T0} offen")
    a(f"{END}:")
    if STAMP:
        a("s_waitcnt vmcnt(0)")
        st("end")
        a(f"s_mul_i32 s{S_T2}, s2, 10")
        a(f"s_add_u32 s{S_T2}, s{S_T2}, s{S_W}")
        st.dump(S_WS, S_T2, WS_DBG+524288, 10)
    a(f"{END}_x:")
    a("s_endpgm")
    return 168
```

```python
import sys
sys.path.insert(0,'gen')
from asmlib import *
from layout import *
import p0, p1
HEADER = open('recurrent_scan__mha_block__mixer_gmlp__prompt.s.ref').read().split("; Override launch")[0]
def build(kernels, path):
    a = Asm(); descs=""; launches=""
    for name, fn, grid, block, lds in kernels:
        r = fn(a, name)
        nv, accum = r if isinstance(r, tuple) else (r, None)
        descs += descriptor(name, nv, accum=accum)
        launches += f"; @launch kernel={name} grid=({grid},1,1) block=({block},1,1) lds={lds}\n"
    a.fix_hazards()
    out = HEADER + "; generated by gen/build.py\n" + launches + '.amdgcn_target "amdgcn-amd-amdhsa--gfx950"\n.text\n' + a.text() + '.section .rodata,"a"\n' + descs
    open(path,"w").write(out)
if __name__=="__main__":
    ks=[("p0_kernel", p0.gen_p0, 230, 256, 0), ("p1_kernel", p1.gen_p1, 256, 512, 147456)]
    try:
        import p2; ks.append(("p2_kernel", p2.gen_p2, 256, 512, p2.LDS))
        import p3; ks.append(("p3_kernel", p3.gen_p3, 256, 640, p3.LDS))
    except ImportError as e:
        print("partial build:", e)
    build(ks, sys.argv[1] if len(sys.argv)>1 else "cur.s")
```

```python
import re

TRANS = ("v_exp_f32","v_log_f32","v_rcp_f32","v_rsq_f32","v_sqrt_f32","v_sin_f32","v_cos_f32","v_rcp_iflag_f32",
         "v_exp_f16","v_log_f16","v_rcp_f16","v_rsq_f16","v_sqrt_f16")
_reg = re.compile(r'^(-|\|)?(abs\()?([vsa])(\d+)\)?\|?$')
_rng = re.compile(r'^(-|\|)?([vsa])\[(\d+):(\d+)\]\|?$')

def regs_of(op):
    op = op.strip()
    m = _reg.match(op)
    if m: return {(m.group(3), int(m.group(4)))}
    m = _rng.match(op)
    if m: return {(m.group(2), i) for i in range(int(m.group(3)), int(m.group(4))+1)}
    if op == "vcc": return {("s",106),("s",107)}
    if op == "vcc_lo": return {("s",106)}
    if op == "vcc_hi": return {("s",107)}
    if op == "exec": return {("s",126),("s",127)}
    if op == "m0": return {("s",124)}
    return set()

class Ins:
    __slots__=("text","op","ops","mods","kind","wr","rd","passes","srcC","srcAB","dpp","states","lds_dma","stdata")
    def __init__(self, text):
        self.text = text
        t = text.split(";")[0].strip()
        parts = t.split(None,1)
        self.op = parts[0]
        rest = parts[1] if len(parts)>1 else ""
        ops = [o.strip() for o in rest.split(",")] if rest else []
        mods = ""
        if ops:
            last = ops[-1].split(None,1)
            ops[-1] = last[0] if last else ""
            mods = last[1] if len(last)>1 else ""
        self.ops=ops; self.mods=mods
        op=self.op
        self.wr=set(); self.rd=set(); self.passes=0; self.srcC=set(); self.srcAB=set(); self.dpp=False
        self.states=1; self.lds_dma=False; self.stdata=set()
        base = re.sub(r'_(e32|e64|dpp|sdwa)$','',op)
        if op=="s_nop":
            self.kind="nop"; self.states=int(ops[0],0)+1
        elif op.startswith("v_mfma"):
            self.kind="mfma"
            self.wr=regs_of(ops[0]); self.srcAB=regs_of(ops[1])|regs_of(ops[2]); self.srcC=regs_of(ops[3])
            self.rd=self.srcAB|self.srcC
            self.passes = 8 if "32x32x16" in op or "32x32x8" in op else (4 if "16x16" in op else 2)
        elif op.startswith("v_"):
            self.kind="valu"
            self.dpp = ("row_" in mods or "quad_perm" in mods or "wave_" in mods or op.endswith("_dpp"))
            if base.startswith("v_cmp"):
                self.wr=regs_of(ops[0]);
                for o in ops[1:]: self.rd|=regs_of(o)
            elif base in ("v_add_co_u32","v_sub_co_u32","v_addc_co_u32","v_subb_co_u32","v_subrev_co_u32","v_mad_u64_u32"):
                self.wr=regs_of(ops[0])|regs_of(ops[1])
                for o in ops[2:]: self.rd|=regs_of(o)
            elif base.startswith("v_permlane") and "swap" in base:
                self.wr=regs_of(ops[0])|regs_of(ops[1]); self.rd=set(self.wr)
            elif base=="v_nop":
                pass
            else:
                self.wr=regs_of(ops[0])
                for o in ops[1:]: self.rd|=regs_of(o)
                if base in ("v_fmac_f32","v_dot2c_f32_bf16","v_pk_fmac_f16","v_writelane_b32") or self.dpp: self.rd|=self.wr
                if base=="v_cndmask_b32" and len(ops)==3: self.rd|=regs_of("vcc")
        elif op.startswith("buffer_") or op.startswith("global_"):
            self.kind="vmem"
            allm = mods.split()
            if "lds" in allm or "_lds_" in op:
                self.lds_dma=True
                for o in ops: self.rd|=regs_of(o)
                self.rd|=regs_of("m0")
            elif "load" in op:
                self.wr=regs_of(ops[0])
                for o in ops[1:]: self.rd|=regs_of(o)
            else:
                for o in ops: self.rd|=regs_of(o)
                if op.startswith("buffer_"):
                    data=regs_of(ops[0])
                    if "atomic" in op and "sc0" in allm: self.wr=set(data)
                else:
                    if "atomic" in op and "sc0" in allm:
                        self.wr=regs_of(ops[0]); data=regs_of(ops[2])
                    else:
                        data=regs_of(ops[1])
                if len(data)>=3: self.stdata=data
        elif op.startswith("ds_"):
            self.kind="ds"
            if "read" in op or "bpermute" in op or "permute" in op or "swizzle" in op:
                self.wr=regs_of(ops[0])
                for o in ops[1:]: self.rd|=regs_of(o)
            else:
                for o in ops: self.rd|=regs_of(o)
        elif op.startswith("s_"):
            self.kind="salu"
            if op.startswith("s_cmp") or op.startswith("s_cbranch") or op in ("s_branch","s_barrier","s_waitcnt","s_endpgm","s_setprio","s_sleep","s_bitcmp0_b32","s_bitcmp1_b32"):
                for o in ops: self.rd|=regs_of(o)
            else:
                if ops: self.wr=regs_of(ops[0])
                for o in ops[1:]: self.rd|=regs_of(o)
                if "saveexec" in op: self.wr|=regs_of("exec")
        else:
            raise ValueError("unknown instr "+text)

def need(prod, cons):
    n=0
    pk, ck = prod.kind, cons.kind
    vw = {r for r in prod.wr if r[0] in "va"}
    sw = {r for r in prod.wr if r[0]=="s"}
    if pk=="valu":
        if ck=="mfma":
            if vw & cons.rd: n=max(n,2)
            if sw & regs_of("exec"): n=max(n,4)
        if ck=="valu":
            cb=re.sub(r'_(e32|e64|dpp|sdwa)$','',cons.op)
            if re.sub(r'_(e32|e64)$','',prod.op) in TRANS and (vw & cons.rd) : n=max(n,1)
            if cb in ("v_readfirstlane_b32","v_readlane_b32") and (vw & cons.rd): n=max(n,1)
            if cons.dpp and (vw & cons.rd): n=max(n,2)
            if cb.startswith("v_permlane") and (vw & cons.rd): n=max(n,2)
            if sw & cons.rd:
                n=max(n,2)
                if cb in ("v_readlane_b32","v_writelane_b32"): n=max(n,4)
            if ("op_sel" in prod.mods or "sdwa" in prod.op or "dst_sel" in prod.mods) and (vw & (cons.rd|cons.wr)): n=max(n,1)
            if prod.op.startswith("v_dot") and (vw & (cons.rd|cons.wr)):
                if cons.op==prod.op and len(cons.ops)>=4 and regs_of(cons.ops[3])==vw and not (vw & (regs_of(cons.ops[1])|regs_of(cons.ops[2]))): pass
                else: n=max(n,3)
        if ck=="vmem" and (sw & cons.rd): n=max(n,5)
        if prod.op.startswith("v_dot") and ck in ("vmem","ds","mfma") and (vw & cons.rd): n=max(n,3)
    if pk=="mfma":
        p=prod.passes
        if ck=="mfma":
            if vw & cons.srcAB: n=max(n,{2:5,4:8,8:12}[p])
            if vw & cons.srcC:
                if cons.srcC==vw and cons.passes==p: n=max(n,2 if p==2 else 0)
                else: n=max(n,{2:4,4:6,8:10}[p])
            elif vw & cons.wr:
                n=max(n,{2:4,4:6,8:10}[p])
        elif ck in ("valu","vmem","ds"):
            if vw & (cons.rd|cons.wr): n=max(n,{2:5,4:8,8:12}[p])
            if ck=="valu" and (prod.srcC & cons.wr): n=max(n,{2:1,4:3,8:7}[p])
    if pk=="salu":
        if (sw & regs_of("m0")) and cons.kind=="vmem" and cons.lds_dma: n=max(n,1)
    if pk=="vmem" and prod.stdata:
        if cons.wr & prod.stdata: n=max(n, 2 if ck in("valu","mfma") else 1)
    return n

class Asm:
    def __init__(self):
        self.lines=[]
        self.uid=0
        self.deferred=[]
    def __call__(self, text):
        for ln in text.split("\n"):
            s=ln.strip()
            if not s: continue
            if s.startswith(";") or s.startswith(".") and not s.endswith(":") :
                self.lines.append(s)
            elif s.endswith(":"):
                self.lines.append(s)
            else:
                self.lines.append(Ins(s))
    def label(self, base="L"):
        self.uid+=1
        return f"{base}_{self.uid}"
    def fix_hazards(self, window=16):
        out=[]; hist=[]
        for it in self.lines:
            if isinstance(it, Ins):
                d=0; req=0
                for p in reversed(hist):
                    if d>=window: break
                    r=need(p,it)-d
                    if r>req: req=r
                    d+=p.states
                if req>0:
                    n=Ins(f"s_nop {req-1}")
                    out.append(n); hist.append(n)
                out.append(it); hist.append(it)
                if it.op in ("s_endpgm","s_branch"): hist=[] if it.op=="s_endpgm" else hist
            else:
                out.append(it)
        self.lines=out
        labels={}
        for i,it in enumerate(self.lines):
            if isinstance(it,str) and it.endswith(":"): labels[it[:-1]]=i
        for i,it in enumerate(self.lines):
            if isinstance(it,Ins) and (it.op.startswith("s_cbranch") or it.op=="s_branch"):
                tgt=labels.get(it.ops[0])
                if tgt is None: raise ValueError("no label "+it.ops[0])
                h=[x for x in self.lines[max(0,i-40):i+1] if isinstance(x,Ins)]
                fwd=[x for x in self.lines[tgt:tgt+40] if isinstance(x,Ins)]
                dist0=0
                for c in fwd:
                    if dist0>=window: break
                    d=dist0
                    for p in reversed(h):
                        if d>=window: break
                        if need(p,c)>d:
                            raise ValueError(f"hazard across branch {it.text}: {p.text} -> {c.text} needs {need(p,c)} has {d}")
                        d+=p.states
                    if c.op in ("s_branch","s_endpgm"): break
                    dist0+=c.states
    def text(self):
        o=[]
        for it in self.lines:
            if isinstance(it,Ins): o.append("    "+it.text)
            else: o.append(it)
        return "\n".join(o)+"\n"

def kernel_begin(a, name):
    a(f".globl {name}")
    a(".p2align 8")
    a(f".type {name},@function")
    a(f"{name}:")

def descriptor(name, nv, ns=102, accum=None):
    if accum is None: accum=(min(nv,256)+3)//4*4
    return f""".p2align 6
.amdhsa_kernel {name}
  .amdhsa_next_free_vgpr {nv}
  .amdhsa_next_free_sgpr {ns}
  .amdhsa_accum_offset {accum}
  .amdhsa_group_segment_fixed_size 0
  .amdhsa_kernarg_size 88
  .amdhsa_user_sgpr_count 2
  .amdhsa_user_sgpr_kernarg_segment_ptr 1
  .amdhsa_system_sgpr_workgroup_id_x 1
  .amdhsa_float_denorm_mode_32 3
  .amdhsa_float_denorm_mode_16_64 3
.end_amdhsa_kernel
"""

def srd(a, d, ptr, nbytes, off=0):
    if off:
        a(f"s_add_u32 s{d}, s{ptr}, {off:#x}")
        a(f"s_addc_u32 s{d+1}, s{ptr+1}, 0")
    else:
        a(f"s_mov_b32 s{d}, s{ptr}")
        a(f"s_mov_b32 s{d+1}, s{ptr+1}")
    a(f"s_mov_b32 s{d+2}, {nbytes:#x}")
    a(f"s_mov_b32 s{d+3}, 0x00020000")

def v(i, n=1):
    return f"v{i}" if n==1 else f"v[{i}:{i+n-1}]"
def s(i, n=1):
    return f"s{i}" if n==1 else f"s[{i}:{i+n-1}]"

import os
STAMP = os.environ.get("STAMP","0")=="1"
class Stamper:
    def __init__(self, a, base=56, maxn=20):
        self.a=a; self.base=base; self.n=0; self.maxn=maxn; self.names=[]
    def __call__(self, name):
        if not STAMP: return
        assert self.n<self.maxn
        r=self.base+2*self.n
        self.a(f"s_memtime s[{r}:{r+1}]")
        if name in ("start","end"):
            q = 96 if name=="start" else 98
            self.a(f"s_memrealtime s[{q}:{q+1}]")
        self.a("s_waitcnt lgkmcnt(0)")
        self.n+=1; self.names.append(name)
    def dump(self, srd, swave_global, off, vt):
        if not STAMP: return
        a=self.a
        a("s_mov_b64 exec, 1")
        a(f"s_lshl_b32 s{self.base-1}, s{swave_global}, 7")
        a(f"s_add_u32 s{self.base-1}, s{self.base-1}, {off}")
        a(f"v_mov_b32 v{vt+1}, 0")
        for i in range(self.n):
            a(f"v_mov_b32 v{vt}, s{self.base+2*i}")
            a(f"buffer_store_dword v{vt}, v{vt+1}, s[{srd}:{srd+3}], s{self.base-1} offen offset:{4*i}")
        for i,q in enumerate((96,98)):
            a(f"v_mov_b32 v{vt}, s{q}")
            a(f"buffer_store_dword v{vt}, v{vt+1}, s[{srd}:{srd+3}], s{self.base-1} offen offset:{120+4*i}")
        print("stamps:", self.names)
```

```python
MB = 1<<20
WS_XNF = 0*MB
WS_HO  = 3*MB
WS_Z2N = 15*MB
WS_QF  = 25*MB
WS_KV  = 28*MB
WS_WF  = 33*MB
WS_ST  = 37*MB
WS_CNT = 37*MB + 524288
WS_DBG = 38*MB
WS_END = 40*MB
KA_X, KA_WQKV, KA_WO, KA_BX, KA_WIN, KA_WSP, KA_BSP, KA_WOUT, KA_OUT, KA_DBG, KA_WS = [8*i for i in range(11)]
import struct
def f32(x): return struct.unpack("<I", struct.pack("<f", x))[0]

import os
WT = os.environ.get("WT","sc1")
if WT: WT=" "+WT
WT3 = os.environ.get("WT3","sc1")
if WT3: WT3=" "+WT3
```

```python
from asmlib import *
from layout import *
import os
PF=os.environ.get('PF','1')=='1'

def bf16r(a, dst, src):
    a(f"v_cvt_pk_bf16_f32 {dst}, {src}, {src}")
    a(f"v_lshlrev_b32 {dst}, 16, {dst}")

def rowsum16(a, x, t):
    for sh in (8,4,2,1):
        a(f"v_add_f32_dpp {x}, {x}, {x} row_ror:{sh} row_mask:0xf bank_mask:0xf")

def prefetch_w(a, vt):
    a(f"""
s_and_b32 s44, s2, 3
s_lshl_b32 s44, s44, 3
s_bfe_u32 s45, s2, 0x30003
s_add_u32 s44, s44, s45            ; cg
s_lshr_b32 s45, s2, 6              ; slot
s_add_u32 s46, s44, 36
s_add_u32 s47, s44, 68
s_sub_u32 s48, s44, 4
s_cmp_lt_u32 s44, 4
s_cselect_b32 s47, s47, s48        ; slot1
s_cmp_eq_u32 s45, 1
s_cselect_b32 s46, s47, s46
s_add_u32 s47, s44, 28
s_sub_u32 s48, s44, 8
s_cmp_lt_u32 s44, 8
s_cselect_b32 s47, s47, s48        ; slot2
s_cselect_b32 s49, 0, 1            ; 1 => qkv
s_cmp_eq_u32 s45, 2
s_cselect_b32 s46, s47, s46
s_cselect_b32 s49, s49, 0
s_sub_u32 s47, s44, 20
s_lshr_b32 s47, s47, 2
s_add_u32 s47, s47, 24
s_cmp_lt_u32 s44, 20
s_cselect_b32 s47, 0x100000, s47
s_cmp_eq_u32 s45, 3
s_cselect_b32 s46, s47, s46
s_cselect_b32 s49, 1, s49
s_lshl_b32 s46, s46, 7
s_cmp_eq_u32 s49, 1
s_cselect_b32 s52, s42, s40
s_cselect_b32 s53, s43, s41
s_mov_b32 s54, {576*9216}
s_cselect_b32 s54, {576*3456}, s54
s_mov_b32 s55, 0x00020000
s_movk_i32 s47, 9216
s_cselect_b32 s47, 3456, s47       ; stride
v_lshrrev_b32 v{vt}, 1, v0         ; row 0..127
v_mul_lo_u32 v{vt}, v{vt}, s47
v_and_b32 v{vt+1}, 1, v0
v_lshl_add_u32 v{vt}, v{vt+1}, 6, v{vt}
s_lshl_b32 s47, s47, 7
""")
    for i in range(5):
        a(f"buffer_load_dword v{vt+2}, v{vt}, s[52:55], s46 offen")
        if i<4: a("s_add_u32 s46, s46, s47")

def gen_p0(a, name="p0_kernel"):
    kernel_begin(a, name)
    END = f"{name}_end"; TILE=f"{name}_tile"
    a(f"""
s_cmp_ge_u32 s2, 256
s_cbranch_scc1 {END}
s_load_dwordx2 s[40:41], s[0:1], {KA_WIN}
s_load_dwordx2 s[42:43], s[0:1], {KA_WQKV}
s_load_dwordx2 s[4:5], s[0:1], {KA_X}
s_load_dwordx2 s[6:7], s[0:1], {KA_WS}
s_load_dwordx2 s[16:17], s[0:1], {KA_WOUT}
s_load_dwordx2 s[18:19], s[0:1], {KA_WO}
s_cmp_ge_u32 s2, 128
s_cbranch_scc1 {TILE}
v_lshrrev_b32 v1, 4, v0
s_lshl_b32 s3, s2, 4
v_add_u32 v1, s3, v1               ; s
v_and_b32 v2, 15, v0               ; j
v_mul_u32_u24 v3, 1152, v1
v_lshl_add_u32 v3, v2, 3, v3
s_waitcnt lgkmcnt(0)
""")
    srd(a, 8, 4, 2048*1152)
    srd(a, 12, 6, WS_END)
    for i in range(9):
        a(f"buffer_load_dwordx2 {v(10+2*i,2)}, v3, s[8:11], 0 offen offset:{i*128}")
    if PF: prefetch_w(a, 68)
    a(f"""
v_lshrrev_b32 v4, 5, v1
v_mul_u32_u24 v4, 36864, v4
v_and_b32 v5, 31, v1
v_lshl_add_u32 v4, v5, 4, v4
v_lshrrev_b32 v5, 1, v2
v_lshl_add_u32 v4, v5, 9, v4       ; (j>>1)*512 = (j>>2)*1024 + ((j>>1)&1)*512
v_and_b32 v5, 1, v2
v_lshl_add_u32 v4, v5, 3, v4
""")
    for i in range(1,9):
        a(f"s_movk_i32 s{24+i}, {i*4096 if i*4096 < 32768 else 0}")
    a("s_mov_b32 s32, 32768")
    a(f"s_waitcnt vmcnt({5 if PF else 0})")
    for i in range(18):
        a(f"v_lshlrev_b32 v{30+2*i}, 16, v{10+i}")
        a(f"v_and_b32 v{31+2*i}, 0xffff0000, v{10+i}")
    a("v_add_f32 v6, v30, v31")
    a("v_add_f32 v7, v32, v33")
    for i in range(4,36,2):
        a(f"v_add_f32 v6, v6, v{30+i}")
        a(f"v_add_f32 v7, v7, v{31+i}")
    a("v_add_f32 v6, v6, v7")
    rowsum16(a,"v6",None)
    a(f"v_mul_f32 v6, {f32(1.0/576):#x}, v6")
    a("v_mov_b32 v7, 0\nv_mov_b32 v8, 0")
    for i in range(0,36,2):
        a(f"v_sub_f32 v66, v{30+i}, v6")
        a(f"v_sub_f32 v67, v{31+i}, v6")
        a("v_fmac_f32 v7, v66, v66")
        a("v_fmac_f32 v8, v67, v67")
    a("v_add_f32 v7, v7, v8")
    rowsum16(a,"v7",None)
    a(f"v_mul_f32 v7, {f32(1.0/576):#x}, v7")
    bf16r(a,"v6","v6")
    bf16r(a,"v7","v7")
    a(f"v_add_f32 v7, {f32(1e-5):#x}, v7")
    bf16r(a,"v7","v7")
    a("v_sqrt_f32 v7, v7")
    bf16r(a,"v7","v7")
    a("v_rcp_f32 v7, v7")
    for i in range(18):
        a(f"v_sub_f32 v{30+2*i}, v{30+2*i}, v6")
        a(f"v_sub_f32 v{31+2*i}, v{31+2*i}, v6")
        a(f"v_cvt_pk_bf16_f32 v{10+i}, v{30+2*i}, v{31+2*i}")
    for i in range(18):
        a(f"v_lshlrev_b32 v{30+2*i}, 16, v{10+i}")
        a(f"v_and_b32 v{31+2*i}, 0xffff0000, v{10+i}")
        a(f"v_mul_f32 v{30+2*i}, v{30+2*i}, v7")
        a(f"v_mul_f32 v{31+2*i}, v{31+2*i}, v7")
        a(f"v_cvt_pk_bf16_f32 v{10+i}, v{30+2*i}, v{31+2*i}")
        if i%2==1:
            k=i//2
            a(f"buffer_store_dwordx2 {v(10+2*k,2)}, v4, s[12:15], {'0' if k==0 else 's%d'%(24+k)} offen")
    a("s_endpgm")
    a(f"""
{TILE}:
s_sub_u32 s3, s2, 128
s_lshl_b32 s3, s3, 8
v_add_u32 v1, s3, v0
s_mov_b32 s24, {(1<<22)//72+1}
v_mul_lo_u32 v2, v1, s24
v_lshrrev_b32 v2, 22, v2           ; f8g = T/72
v_mul_u32_u24 v3, 72, v2
v_sub_u32 v3, v1, v3               ; d8
s_waitcnt lgkmcnt(0)
s_cmp_ge_u32 s2, 209
s_cselect_b32 s8, s18, s16
s_cselect_b32 s9, s19, s17
s_mov_b32 s10, {2304*1152}
s_cselect_b32 s10, {576*1152}, s10
s_mov_b32 s11, 0x00020000
s_cselect_b32 s25, 288, 0
""")
    srd(a, 12, 6, WS_END)
    a(f"""
v_subrev_u32 v4, s25, v2           ; f8 local
v_mul_u32_u24 v4, {8*1152}, v4
v_lshl_add_u32 v4, v3, 4, v4
s_movk_i32 s26, {4*1152}
""")
    for i in range(8):
        a(f"buffer_load_dwordx4 {v(12+4*i,4)}, v4, s[8:11], {'0' if i<4 else 's26'} offen offset:{(i%4)*1152}")
    if PF: prefetch_w(a, 68)
    a(f"""
s_cmp_lg_u32 s2, 255
s_cbranch_scc1 {name}_nocnt
v_lshlrev_b32 v5, 7, v0
v_add_u32 v5, {WS_CNT}, v5
v_mov_b32 v6, 0
v_cmp_gt_u32 vcc, 64, v0
s_and_saveexec_b64 s[20:21], vcc
s_cbranch_execz {END}
buffer_store_dword v6, v5, s[12:15], 0 offen sc1
s_endpgm
{name}_nocnt:
v_mul_u32_u24 v5, 57, v3
v_lshrrev_b32 v5, 9, v5            ; cb = d8/9  (d8<72)
v_mul_u32_u24 v6, 9, v5
v_sub_u32 v6, v3, v6               ; dl8
v_mul_u32_u24 v5, 90, v5
v_lshrrev_b32 v7, 2, v2
v_add_u32 v5, v5, v7
v_mul_u32_u24 v5, 4608, v5         ; (cb*90+ks)*4608
v_and_b32 v7, 3, v2                ; g
v_lshrrev_b32 v8, 1, v6
v_lshlrev_b32 v8, 10, v8           ; fr*1024
v_add_u32 v5, v5, v8
v_and_b32 v8, 1, v6
v_lshlrev_b32 v8, 7, v8
v_add_u32 v5, v5, v8               ; + (dl8&1)*128
v_lshlrev_b32 v8, 8, v7            ; g*256
v_lshlrev_b32 v9, 7, v7            ; g*128
v_cmp_eq_u32 vcc, 8, v6
v_cndmask_b32 v8, v8, v9, vcc
v_add_u32 v5, v5, v8
v_add_u32 v5, {WS_WF}, v5
s_mov_b32 s27, 0x05040100
s_mov_b32 s28, 0x07060302
v_cmp_gt_u32 vcc, 25920, v1
s_and_saveexec_b64 s[20:21], vcc
s_cbranch_execz {END}
s_waitcnt vmcnt({5 if PF else 0})
""")
    for jj in range(8):
        o = 44 + 4*(jj%2)
        for i in range(4):
            lo = 12+4*(2*i)+(jj>>1); hi = 12+4*(2*i+1)+(jj>>1)
            a(f"v_perm_b32 v{o+i}, v{hi}, v{lo}, {'s27' if jj%2==0 else 's28'}")
        a(f"buffer_store_dwordx4 {v(o,4)}, v5, s[12:15], 0 offen offset:{jj*16}")
    a(f"{END}:")
    a("s_endpgm")
    return 72
```

```python
from asmlib import *
from layout import *
import math, os
PF=os.environ.get('PF1','1')=='1'
PKG=os.environ.get('PKG','0')=='1'

V_LANE=1
V_DW = 2
V_DQ = 3
V_T  = 4
V_HO = 8
V_C1 = 9
V_SUM=10; V_SQ=11
V_N16=12
V_HF8=13
V_SIG=14
V_ONES=15
V_TMP=16
V_ACC=32
V_B  = 48
V_PK = 64
V_A  = 96
V_PF = 240; V_DP=241; V_FL=242; V_ONE=243; V_FV=244; V_L16=245; V_ZERO=246; V_POLL=247
V_K0=248; V_K1=250
NV   = 252
S_WS=8; S_WIN=12; S_WQ=16
S_RB=20; S_CG=21; S_W=22; S_GRP=23; S_RB32=24
S_T0=25; S_T1=26; S_T2=27; S_T3=28
S_DSO=29; S_DST=30; S_XTRA=31
S_HOB=32
S_COL=33
S_SCALE=34; S_QKB=35; S_QKBLK=36; S_AO=37
S_PS=48
S_G0=52; S_G1=54
PANEL=73728
PFK=21
SCR=2*PANEL
FL=SCR+8192
LDS=FL+64
C0 = -2.0*math.log2(math.e)*math.sqrt(2.0/math.pi)
C1 = C0*0.044715
QSCALE = math.log2(math.e)/math.sqrt(18.0)

def dma_setup(a, mat, scol, buf, nper):
    if mat=='w':
        for i in range(4): a(f"s_mov_b32 s{S_PS+i}, s{S_WIN+i}")
        a(f"v_mov_b32 v{V_DP}, v{V_DW}"); a(f"s_mov_b32 s{S_DST}, {8*9216}")
    elif mat=='q':
        for i in range(4): a(f"s_mov_b32 s{S_PS+i}, s{S_WQ+i}")
        a(f"v_mov_b32 v{V_DP}, v{V_DQ}"); a(f"s_mov_b32 s{S_DST}, {8*3456}")
    a(f"s_mul_i32 s{S_T0}, s{S_W}, {nper}")
    a(f"s_mul_i32 s{S_DSO}, s{S_T0}, s{S_DST}")
    a(f"s_add_u32 s{S_DSO}, s{S_DSO}, s{scol}")
    a(f"s_lshl_b32 s{S_T0}, s{S_T0}, 10")
    a(f"s_add_u32 m0, s{S_T0}, {buf*PANEL}")

def dma_one(a, cond=False):
    t = f"buffer_load_dwordx4 v{V_DP}, {s(S_PS,4)}, s{S_DSO} offen lds\ns_add_u32 s{S_DSO}, s{S_DSO}, s{S_DST}\ns_add_u32 m0, m0, 1024"
    if cond:
        L=a.label("p1c")
        return f"s_cbranch_vccz {L}\n{t}\n{L}:"
    return t

def flag_add(a, off):
    a("s_mov_b64 exec, 1")
    a(f"ds_add_u32 v{V_FL}, v{V_ONE} offset:{off}")
    a("s_mov_b64 exec, -1")

def flag_wait(a, off, target):
    L=a.label("p1fw"); D=a.label("p1fd")
    a(f"""{L}:
ds_read_b32 v{V_FV}, v{V_FL} offset:{off}
s_waitcnt lgkmcnt(0)
v_readfirstlane_b32 s{S_T0}, v{V_FV}
s_cmp_ge_u32 s{S_T0}, {target}
s_cbranch_scc1 {D}
s_sleep 1
s_sub_u32 s38, s38, 1
s_cmp_gt_i32 s38, 0
s_cbranch_scc1 {L}
{D}:""")
def LANDED(p): return 4*p
def DONE(p): return 16+4*p

def if_grp(a, g):
    L=a.label("p1g")
    a(f"s_cmp_lg_u32 s{S_GRP}, {g}")
    a(f"s_cbranch_scc1 {L}")
    return L

def mphase2(a, buf, tile, normal, dma, common):
    Ln=a.label("p1n"); Le=a.label("p1e")
    a(f"s_cbranch_vccz {Ln}")
    ex={k:list(x) for k,x in common(True).items()}
    for k in dma: ex.setdefault(k,[]).insert(0, dma_one(a))
    mphase(a,buf,tile,normal=normal,extra=ex)
    a(f"s_branch {Le}")
    a(f"{Ln}:")
    mphase(a,buf,tile,normal=normal,extra=common(False))
    a(f"{Le}:")

def mphase(a, buf, tile, normal=False, extra=None, vmw=None):
    toff = 0 if tile is None else tile*512
    extra = extra or {}; vmw = vmw or {}
    def rd(ks):
        base = V_T + 2*buf + (1 if ks>=16 else 0)
        off = (ks-16 if ks>=16 else ks)*2048 + toff
        b = V_B + 4*(ks%4)
        a(f"ds_read_b64_tr_b16 {v(b,2)}, v{base} offset:{off}")
        a(f"ds_read_b64_tr_b16 {v(b+2,2)}, v{base} offset:{off+256}")
    PM=os.environ.get("P1PRIO","c")
    if PM=="a": a("s_setprio 1")
    else:
        a("s_setprio 2"); L=if_grp(a,1); a("s_setprio 3"); a(f"{L}:")
    for ks in range(3): rd(ks)
    for ks in range(36):
        if ks+3 < 36: rd(ks+3)
        for x in extra.get(ks,[]): a(x)
        if PM=="a" and ks==10: a("s_setprio 2")
        if PM=="a" and ks==20: a("s_setprio 3")
        if PM=="c" and ks==24: a("s_setprio 3")
        left = min(3, 35-ks)
        w = f"s_waitcnt lgkmcnt({2*left})"
        if ks in vmw: w = f"s_waitcnt vmcnt({vmw[ks]}) lgkmcnt({2*left})"
        a(w)
        b = v(V_B+4*(ks%4),4); x = v(V_A+4*ks,4); acc=v(V_ACC,16)
        c = "0" if ks==0 else acc
        if normal: a(f"v_mfma_f32_32x32x16_bf16 {acc}, {x}, {b}, {c}")
        else:      a(f"v_mfma_f32_32x32x16_bf16 {acc}, {b}, {x}, {c}")
    a("s_setprio 0")
    if PM!="a":
        L=if_grp(a,1); a("s_setprio 1"); a(f"{L}:")
    a("s_nop 10")

def gelu16(a, dst, mid=None, stats=False):
    mid = list(mid or [])
    def m():
        if mid: a(mid.pop(0))
    for h in range(2):
        X=[V_ACC+8*h+i for i in range(8)]; T=[V_TMP+i for i in range(8)]
        if PKG:
            for i in range(0,8,2): a(f"v_pk_mul_f32 {v(T[i],2)}, {v(X[i],2)}, {v(X[i],2)}")
            for i in range(0,8,2): a(f"v_pk_fma_f32 {v(T[i],2)}, {v(T[i],2)}, {v(V_K1,2)}, {v(V_K0,2)}")
            m()
            for i in range(0,8,2): a(f"v_pk_mul_f32 {v(T[i],2)}, {v(T[i],2)}, {v(X[i],2)}")
            for x,t in zip(X,T): a(f"v_exp_f32 v{t}, v{t}")
            m()
            for i in range(0,8,2): a(f"v_pk_add_f32 {v(T[i],2)}, {v(T[i],2)}, 1.0 op_sel_hi:[1,0]")
            for x,t in zip(X,T): a(f"v_rcp_f32 v{t}, v{t}")
            m()
            for i in range(0,8,2): a(f"v_pk_mul_f32 {v(X[i],2)}, {v(X[i],2)}, {v(T[i],2)}")
        else:
            for x,t in zip(X,T): a(f"v_mul_f32 v{t}, v{x}, v{x}")
            for x,t in zip(X,T): a(f"v_fmaak_f32 v{t}, v{t}, v{V_C1}, {f32(C0):#x}")
            m()
            for x,t in zip(X,T): a(f"v_mul_f32 v{t}, v{t}, v{x}")
            for x,t in zip(X,T): a(f"v_exp_f32 v{t}, v{t}")
            m()
            for x,t in zip(X,T): a(f"v_add_f32 v{t}, 1.0, v{t}")
            for x,t in zip(X,T): a(f"v_rcp_f32 v{t}, v{t}")
            m()
            for x,t in zip(X,T): a(f"v_mul_f32 v{x}, v{x}, v{t}")
        for i in range(4): a(f"v_cvt_pk_bf16_f32 v{dst+4*h+i}, v{X[2*i]}, v{X[2*i+1]}")
        if stats:
            for i in range(0,8,2):
                a(f"v_add_f32 v{V_SUM}, v{V_SUM}, v{X[i]}")
                a(f"v_fmac_f32 v{V_SQ}, v{X[i]}, v{X[i]}")
                a(f"v_add_f32 v{V_ONES}, v{V_ONES}, v{X[i+1]}")
                a(f"v_fmac_f32 v{V_PF}, v{X[i+1]}, v{X[i+1]}")
    assert not mid

def epi_z2(a, idx, pre=None, mid=None):
    d = V_PK+8*idx
    gelu16(a, d, mid, stats=True)
    if pre: pre()

def epi_z1(a, tile, pre=None):
    d = V_TMP+8
    gelu16(a, d)
    if pre: pre()
    a(f"s_lshl_b32 s{S_T1}, s{S_COL}, 5")
    a(f"s_add_u32 s{S_T1}, s{S_T1}, s{S_HOB}")
    a(f"buffer_store_dwordx4 {v(d,4)}, v{V_HO}, {s(S_WS,4)}, s{S_T1} offen offset:{tile*1024}{WT}")
    a(f"buffer_store_dwordx4 {v(d+4,4)}, v{V_HO}, {s(S_WS,4)}, s{S_T1} offen offset:{tile*1024+512}{WT}")

def epi_qk(a, tile, pre=None):
    for i in range(16): a(f"v_mul_f32 v{V_ACC+i}, s{S_SCALE}, v{V_ACC+i}")
    for p in range(8): a(f"v_cvt_pk_bf16_f32 v{V_TMP+8+p}, v{V_ACC+2*p}, v{V_ACC+2*p+1}")
    t=V_TMP
    a(f"v_add_u32 v{t}, s{S_COL}, v{V_HF8}")
    a(f"v_lshrrev_b32 v{t+5}, 2, v{V_N16}")
    a(f"v_add_u32 v{t+5}, 1024, v{t+5}")
    for p in range(8):
        cadd = tile*32 + 16*(p>>2) + 2*(p&3)
        o=V_ACC+p
        a(f"v_add_u32 v{t+1}, {cadd}, v{t}")
        a(f"v_mul_u32_u24 v{t+2}, 3641, v{t+1}")
        a(f"v_lshrrev_b32 v{t+2}, 16, v{t+2}")
        a(f"v_mul_u32_u24 v{t+3}, 18, v{t+2}")
        a(f"v_sub_u32 v{t+1}, v{t+1}, v{t+3}")
        a(f"v_lshrrev_b32 v{t+3}, 3, v{t+1}")
        a(f"v_lshl_add_u32 v{t+3}, v{t+3}, 9, v{V_N16}")
        a(f"v_and_b32 v{t+4}, 7, v{t+1}")
        a(f"v_cmp_lt_u32 vcc, 15, v{t+1}")
        a(f"v_lshl_add_u32 v{t+3}, v{t+4}, 1, v{t+3}")
        a(f"v_mul_lo_u32 v{t+2}, v{t+2}, s{S_QKBLK}")
        a(f"v_cndmask_b32 v{t+3}, v{t+3}, v{t+5}, vcc")
        a(f"v_add_u32 v{o}, v{t+3}, v{t+2}")
    if pre: pre()
    for p in range(8):
        a(f"buffer_store_dword v{V_TMP+8+p}, v{V_ACC+p}, {s(S_WS,4)}, s{S_QKB} offen")

def epi_v(a, tile, pre=None):
    for p in range(8): a(f"v_cvt_pk_bf16_f32 v{V_TMP+8+p}, v{V_ACC+2*p}, v{V_ACC+2*p+1}")
    t=V_TMP
    a(f"v_add_u32 v{t}, s{S_COL}, v{V_SIG}")
    if tile: a(f"v_add_u32 v{t}, {tile*32}, v{t}")
    a(f"v_mul_u32_u24 v{t+2}, 3641, v{t}")
    a(f"v_lshrrev_b32 v{t+2}, 16, v{t+2}")
    a(f"v_mul_u32_u24 v{t+3}, 18, v{t+2}")
    a(f"v_sub_u32 v{t+1}, v{t}, v{t+3}")
    a(f"v_mul_u32_u24 v{t+2}, {64*2304}, v{t+2}")
    a(f"v_lshl_add_u32 v{t+2}, v{t+1}, 4, v{t+2}")
    a(f"v_mul_u32_u24 v{t+3}, 36, v{V_HF8}")
    a(f"v_add_u32 v{t+2}, v{t+2}, v{t+3}")
    if pre: pre()
    a(f"s_mul_i32 s{S_T1}, s{S_RB32}, 2304")
    a(f"s_add_u32 s{S_T1}, s{S_T1}, {WS_KV+1152}")
    a(f"buffer_store_dwordx4 {v(V_TMP+8,4)}, v{t+2}, {s(S_WS,4)}, s{S_T1} offen")
    a(f"buffer_store_dwordx4 {v(V_TMP+12,4)}, v{t+2}, {s(S_WS,4)}, s{S_T1} offen offset:576")

def publish(a):
    t=V_TMP
    a(f"v_add_f32 v{V_SUM}, v{V_SUM}, v{V_ONES}")
    a(f"v_add_f32 v{V_SQ}, v{V_SQ}, v{V_PF}")
    a(f"v_permlane32_swap_b32 v{V_SUM}, v{V_SQ}")
    a(f"v_lshlrev_b32 v{t}, 2, v{V_LANE}")
    a(f"s_lshl_b32 s{S_T1}, s{S_RB32}, 5")
    a(f"s_add_u32 s{S_T1}, s{S_T1}, s{S_CG}")
    a(f"s_lshl_b32 s{S_T1}, s{S_T1}, 8")
    a(f"s_add_u32 s{S_T1}, s{S_T1}, {WS_ST}")
    a(f"v_add_f32 v{V_SUM}, v{V_SUM}, v{V_SQ}")
    a(f"buffer_store_dword v{V_SUM}, v{t}, {s(S_WS,4)}, s{S_T1} offen sc1")

def signal_txt(a, cmpop, vm):
    L=a.label("p1s")
    return f"""s_cmp_{cmpop}_u32 s{S_CG}, 4
s_cbranch_scc0 {L}
s_waitcnt vmcnt({vm})
s_lshl_b32 s{S_T1}, s{S_RB32}, 7
s_add_u32 s{S_T1}, s{S_T1}, {WS_CNT}
s_mov_b64 exec, 1
buffer_atomic_add v{V_ONE}, v{V_ZERO}, {s(S_WS,4)}, s{S_T1} offen
s_mov_b64 exec, -1
{L}:"""

def pf_txt(a, ph):
    if not PF: return "s_nop 0"
    L=a.label("p1pf")
    return f"""s_and_b32 s{S_T2}, s{S_W}, 3
s_cmp_lg_u32 s{S_T2}, {ph}
s_cbranch_scc1 {L}
s_mov_b32 s40, s46
s_mov_b32 s41, s47
s_mov_b32 s42, {2048*4096}
s_mov_b32 s43, 0x00020000
s_and_b32 s{S_T2}, s2, 7
s_lshl_b32 s{S_T2}, s{S_T2}, 5
s_lshr_b32 s{S_T3}, s2, 3
s_add_u32 s{S_T2}, s{S_T2}, s{S_T3}
s_lshl_b32 s{S_T2}, s{S_T2}, 3
s_add_u32 s{S_T2}, s{S_T2}, s{S_W}
s_lshl_b32 s{S_T2}, s{S_T2}, 12
v_lshlrev_b32 v{V_TMP}, 2, v{V_L16}
buffer_load_dword v{V_POLL}, v{V_TMP}, s[40:43], s{S_T2} offen
{L}:"""

def poll_load():
    return f"s_lshl_b32 s{S_T1}, s{S_RB32}, 7\ns_add_u32 s{S_T1}, s{S_T1}, {WS_CNT}\nbuffer_load_dword v{V_POLL}, v{V_ZERO}, {s(S_WS,4)}, s{S_T1} offen sc1"

def poll_and_load(a):
    Lp=a.label("p1poll"); Lg=a.label("p1go")
    a(f"""
s_mov_b32 s{S_T2}, 0x40000
{Lp}:
s_waitcnt vmcnt(0)
v_readfirstlane_b32 s{S_T3}, v{V_POLL}
s_cmp_ge_u32 s{S_T3}, 32
s_cbranch_scc1 {Lg}
s_sleep 2
{poll_load()}
s_sub_u32 s{S_T2}, s{S_T2}, 1
s_cmp_lg_u32 s{S_T2}, 0
s_cbranch_scc1 {Lp}
{Lg}:
s_lshl_b32 s{S_T1}, s{S_RB32}, 13
s_add_u32 s{S_T1}, s{S_T1}, {WS_ST}
s_add_u32 s{S_T3}, s{S_T1}, 4096
""")
    def ld(regs):
        for i in range(8):
            a(f"buffer_load_dwordx4 {v(regs[i],4)}, v{V_L16}, {s(S_WS,4)}, s{S_T1 if i<4 else S_T3} offen offset:{(i%4)*1024} sc1")
    La=a.label("p1a"); Lj=a.label("p1j")
    a(f"s_cmp_lt_u32 s{S_CG}, 4\ns_cbranch_scc1 {La}")
    ld(SREG_B); a(f"s_branch {Lj}\n{La}:"); ld(SREG_A); a(f"{Lj}:")
SREG_A=[V_A+4*i for i in range(8)]
SREG_B=[V_PK+16+4*i for i in range(4)]+[V_B+4*i for i in range(4)]
def stats_reduce(a):
    def red(r):
        for i in range(0,8,2):
            for j in range(4): a(f"v_add_f32 v{r[i]+j}, v{r[i]+j}, v{r[i+1]+j}")
        for j in range(4):
            a(f"v_add_f32 v{r[0]+j}, v{r[0]+j}, v{r[2]+j}")
            a(f"v_add_f32 v{r[4]+j}, v{r[4]+j}, v{r[6]+j}")
        for j in range(4): a(f"v_add_f32 v{r[0]+j}, v{r[0]+j}, v{r[4]+j}")
        a(f"ds_write_b128 v{V_FV}, {v(r[0],4)}")
    a(f"s_lshl_b32 s{S_T2}, s{S_W}, 10")
    a(f"s_add_u32 s{S_T2}, s{S_T2}, {SCR}")
    a(f"v_add_u32 v{V_FV}, s{S_T2}, v{V_L16}")
    La=a.label("p1a"); Lj=a.label("p1j")
    a(f"s_cmp_lt_u32 s{S_CG}, 4\ns_cbranch_scc1 {La}")
    red(SREG_B); a(f"s_branch {Lj}\n{La}:"); red(SREG_A); a(f"{Lj}:")

def gen_p1(a, name="p1_kernel"):
    kernel_begin(a, name)
    END=f"{name}_end"
    st=Stamper(a)
    a(f"""
s_cmp_ge_u32 s2, 256
s_cbranch_scc1 {END}_x
""")
    st("start")
    a(f"""
s_load_dwordx2 s[4:5], s[0:1], {KA_WS}
s_load_dwordx4 s[44:47], s[0:1], {KA_WIN}
s_load_dwordx2 s[40:41], s[0:1], {KA_WQKV}
s_and_b32 s3, s2, 7
s_lshr_b32 s42, s2, 3
s_lshr_b32 s{S_RB}, s3, 2
s_lshl_b32 s{S_RB}, s{S_RB}, 2
s_lshr_b32 s43, s42, 3
s_add_u32 s{S_RB}, s{S_RB}, s43
s_and_b32 s{S_CG}, s3, 3
s_lshl_b32 s{S_CG}, s{S_CG}, 3
s_and_b32 s43, s42, 7
s_add_u32 s{S_CG}, s{S_CG}, s43
v_lshrrev_b32 v1, 6, v0
v_readfirstlane_b32 s{S_W}, v1
v_and_b32 v{V_LANE}, 63, v0
s_lshr_b32 s{S_GRP}, s{S_W}, 2
s_and_b32 s43, s{S_CG}, 1
s_lshl_b32 s43, s43, 2
s_xor_b32 s43, s43, s{S_W}
s_lshl_b32 s{S_RB32}, s{S_RB}, 3
s_add_u32 s{S_RB32}, s{S_RB32}, s43
v_and_b32 v16, 31, v{V_LANE}
v_lshrrev_b32 v17, 2, v16              ; row 0..7
v_and_b32 v18, 3, v{V_LANE}
v_lshlrev_b32 v18, 4, v18
v_lshrrev_b32 v19, 5, v{V_LANE}        ; hf
v_lshl_add_u32 v18, v19, 6, v18
v_mul_u32_u24 v{V_DW}, 9216, v17
v_add_u32 v{V_DW}, v{V_DW}, v18
v_mul_u32_u24 v{V_DQ}, 3456, v17
v_add_u32 v{V_DQ}, v{V_DQ}, v18
v_lshlrev_b32 v{V_L16}, 4, v{V_LANE}
s_mul_i32 s{S_AO}, s{S_RB32}, 36864
s_mov_b32 s38, 0x80000
s_lshl_b32 s{S_T2}, s{S_CG}, 7
s_add_u32 s{S_T2}, s{S_T2}, 4608
s_cmp_eq_u32 s{S_GRP}, 0
s_cselect_b64 s[{S_G0}:{S_G0+1}], -1, 0
s_cselect_b64 s[{S_G1}:{S_G1+1}], 0, -1
s_waitcnt lgkmcnt(0)
""")
    srd(a, S_WS, 4, WS_END)
    srd(a, S_WIN, 44, 576*9216)
    srd(a, S_WQ, 40, 576*3456)
    def a_load(ks):
        t=f"buffer_load_dwordx4 {v(V_A+4*ks,4)}, v{V_L16}, {s(S_WS,4)}, s{S_AO} offen offset:{(ks%4)*1024}"
        if ks%4==3: t+=f"\ns_add_u32 s{S_AO}, s{S_AO}, 4096"
        return t
    NA0=12
    L=if_grp(a,0)
    dma_setup(a,'w',S_T2,0,18)
    for i in range(18): a(dma_one(a))
    for ks in range(NA0): a(a_load(ks))
    a(f"{L}:")
    a(f"""
v_lshlrev_b32 v{V_N16}, 4, v16
v_lshlrev_b32 v{V_HF8}, 3, v19
v_and_b32 v20, 0x13, v16
v_and_b32 v21, 4, v16
v_lshl_add_u32 v20, v21, 1, v20
v_and_b32 v21, 8, v16
v_lshrrev_b32 v21, 1, v21
v_add_u32 v{V_SIG}, v20, v21
v_lshlrev_b32 v20, 10, v19
v_bfe_u32 v21, v{V_LANE}, 2, 2
v_lshl_add_u32 v20, v21, 6, v20
v_bfe_u32 v21, v{V_LANE}, 4, 1
v_lshl_add_u32 v20, v21, 5, v20
v_and_b32 v21, 1, v{V_LANE}
v_lshl_add_u32 v20, v21, 4, v20
v_bfe_u32 v21, v{V_LANE}, 1, 1
v_lshl_add_u32 v{V_T}, v21, 3, v20
v_add_u32 v{V_T+1}, 32768, v{V_T}
v_add_u32 v{V_T+2}, {PANEL}, v{V_T}
v_add_u32 v{V_T+3}, {PANEL+32768}, v{V_T}
v_lshrrev_b32 v20, 4, v16
v_mul_u32_u24 v20, 92160, v20
v_and_b32 v21, 15, v16
v_lshl_add_u32 v20, v21, 4, v20
v_lshl_add_u32 v{V_HO}, v19, 8, v20
s_mul_i32 s{S_HOB}, s{S_RB32}, {2*92160}
s_add_u32 s{S_HOB}, s{S_HOB}, {WS_HO}
v_mov_b32 v{V_C1}, {f32(C1):#x}
v_mov_b32 v{V_K0}, {f32(C0):#x}
v_mov_b32 v{V_K0+1}, {f32(C0):#x}
v_mov_b32 v{V_K1}, {f32(C1):#x}
v_mov_b32 v{V_K1+1}, {f32(C1):#x}
v_mov_b32 v{V_SUM}, 0
v_mov_b32 v{V_SQ}, 0
v_mov_b32 v{V_ONES}, 0
v_mov_b32 v{V_PF}, 0
v_mov_b32 v{V_ONE}, 1
v_mov_b32 v{V_ZERO}, 0
v_mov_b32 v{V_FL}, {FL}
s_cmp_ge_u32 s{S_CG}, 20
s_cselect_b32 s{S_XTRA}, 1, 0
s_cmp_eq_u32 s{S_GRP}, 0
s_cselect_b32 s{S_XTRA}, s{S_XTRA}, 0
v_lshlrev_b32 v20, 2, v{V_LANE}
v_add_u32 v20, {FL}, v20
s_mov_b64 exec, 0xffff
ds_write_b32 v20, v{V_ZERO}
s_mov_b64 exec, -1
""")
    Lg1=a.label("p1g1"); Lj0=a.label("p1j0")
    a(f"s_cmp_lg_u32 s{S_GRP}, 0")
    a(f"s_cbranch_scc1 {Lg1}")
    a(f"s_waitcnt vmcnt({NA0}) lgkmcnt(0)")
    a("s_barrier")
    n0=st.n
    st("B1")
    ex={}; vw={}; issued=NA0
    for ks in range(36):
        l=[]
        while issued<36 and issued < NA0+2*(ks+1): l.append(a_load(issued)); issued+=1
        ex[ks]=l; vw[ks]=issued-ks-1
    mphase(a,0,0,extra=ex,vmw=vw)
    a(f"""
s_add_u32 s{S_T2}, s{S_CG}, 68
s_sub_u32 s{S_T3}, s{S_CG}, 4
s_cmp_lt_u32 s{S_CG}, 4
s_cselect_b32 s{S_T2}, s{S_T2}, s{S_T3}
s_lshl_b32 s{S_T2}, s{S_T2}, 7
""")
    dma_setup(a,None,S_T2,1,18)
    a(f"s_branch {Lj0}")
    a(f"{Lg1}:")
    a("s_waitcnt lgkmcnt(0)")
    a("s_barrier")
    for i in range(4): a(f"s_mov_b32 s{S_PS+i}, s{S_WIN+i}")
    a(f"v_mov_b32 v{V_DP}, v{V_DW}")
    for ks in range(NA0): a(a_load(ks))
    st.n=n0
    st("B1")
    mphase(a,0,0,extra=ex,vmw=vw)
    a(f"{Lj0}:")
    st("M0")
    epi_z2(a,0)
    st("E0")
    mphase(a,0,1,extra={PFK:[pf_txt(a,0)]})
    flag_add(a, DONE(0))
    st("M1")
    def landed(p, g):
        def f():
            L=if_grp(a,g)
            a("s_waitcnt vmcnt(0)")
            flag_add(a, LANDED(p))
            a(f"{L}:")
        return f
    a(f"s_mov_b64 vcc, s[{S_G0}:{S_G0+1}]")
    def dma_n(n):
        L=a.label("p1c")
        return f"s_cbranch_vccz {L}\n" + "\n".join(dma_one(a) for _ in range(n)) + f"\n{L}:"
    a(dma_n(6))
    epi_z2(a,1,pre=landed(1,0),mid=[dma_n(4),dma_n(4),dma_n(4)])
    Lz=a.label("p1z2")
    a(f"s_cmp_lt_u32 s{S_CG}, 4")
    a(f"s_cbranch_scc1 {Lz}")
    publish(a)
    a(f"{Lz}:")
    a(f"""
s_add_u32 s{S_T2}, s{S_CG}, 28
s_sub_u32 s{S_T3}, s{S_CG}, 8
s_cmp_lt_u32 s{S_CG}, 8
s_cselect_b32 s{S_T2}, s{S_T2}, s{S_T3}
s_cselect_b32 s{S_PS}, s{S_WIN}, s{S_WQ}
s_cselect_b32 s{S_PS+1}, s{S_WIN+1}, s{S_WQ+1}
s_cselect_b32 s{S_PS+2}, s{S_WIN+2}, s{S_WQ+2}
s_mov_b32 s{S_DST}, {8*3456}
s_cselect_b32 s{S_DST}, {8*9216}, s{S_DST}
s_cselect_b64 vcc, -1, 0
v_cndmask_b32 v{V_DP}, v{V_DQ}, v{V_DW}, vcc
s_lshl_b32 s{S_T2}, s{S_T2}, 7
""")
    dma_setup(a,None,S_T2,0,9)
    a(f"s_sub_u32 s{S_COL}, s{S_CG}, 4")
    a(f"s_lshl_b32 s{S_COL}, s{S_COL}, 6")
    st("E1")
    flag_wait(a, LANDED(1), 4)
    L=if_grp(a,1); flag_wait(a, DONE(0), 8); a(f"{L}:")
    st("W2")
    DM=[2*i for i in range(9)]
    a(f"s_mov_b64 vcc, s[{S_G1}:{S_G1+1}]")
    mphase2(a,1,0,False,DM,lambda d: {19:[signal_txt(a,"ge",9 if d else 0)], PFK:[pf_txt(a,1)]})
    st("M2")
    def either(cmp, val, fa, fb):
        La=a.label("p1a"); Lj=a.label("p1j")
        a(f"s_cmp_{cmp}_u32 s{S_CG}, {val}")
        a(f"s_cbranch_scc1 {La}")
        fb()
        a(f"s_branch {Lj}")
        a(f"{La}:")
        fa()
        a(f"{Lj}:")
    either("lt",4, lambda: epi_z2(a,2,pre=landed(2,1)), lambda: epi_z1(a,0,pre=landed(2,1)))
    L=if_grp(a,0); flag_wait(a, DONE(0), 8); a(f"{L}:")
    st("E2")
    a(f"s_mov_b64 vcc, s[{S_G0}:{S_G0+1}]")
    mphase2(a,1,1,False,DM,lambda d: {PFK:[pf_txt(a,2)]})
    flag_add(a, DONE(1))
    st("M3")
    either("lt",4, lambda: (epi_z2(a,3,pre=landed(2,0)), publish(a)), lambda: epi_z1(a,1,pre=landed(2,0)))
    a(f"""
s_sub_u32 s{S_T2}, s{S_CG}, 20
s_lshr_b32 s{S_T2}, s{S_T2}, 2
s_add_u32 s{S_T2}, s{S_T2}, 24
s_lshl_b32 s{S_T2}, s{S_T2}, 7
""")
    dma_setup(a,'q',S_T2,1,9)
    a(f"""
s_add_u32 s{S_T2}, s{S_CG}, 28
s_sub_u32 s{S_T3}, s{S_CG}, 8
s_cmp_lt_u32 s{S_CG}, 8
s_cselect_b32 s{S_COL}, s{S_T2}, s{S_T3}
s_sub_u32 s{S_T3}, s{S_CG}, 17
s_cmp_lt_u32 s{S_CG}, 17
s_cselect_b32 s{S_COL}, s{S_COL}, s{S_T3}
s_cselect_b32 s{S_SCALE}, {f32(QSCALE):#x}, 1.0
s_movk_i32 s{S_T3}, 2304
s_cselect_b32 s{S_T2}, 1152, s{S_T3}
s_mov_b32 s{S_T3}, {WS_KV}
s_cselect_b32 s{S_QKB}, {WS_QF}, s{S_T3}
s_lshl_b32 s{S_QKBLK}, s{S_T2}, 6
s_mul_i32 s{S_T2}, s{S_T2}, s{S_RB32}
s_add_u32 s{S_QKB}, s{S_QKB}, s{S_T2}
s_sub_u32 s{S_T3}, s{S_CG}, 26
s_cmp_ge_u32 s{S_CG}, 26
s_cselect_b32 s{S_COL}, s{S_T3}, s{S_COL}
s_lshl_b32 s{S_COL}, s{S_COL}, 6
s_cmp_ge_u32 s{S_CG}, 20
s_cselect_b64 s[{S_G0}:{S_G0+1}], s[{S_G0}:{S_G0+1}], 0
s_cselect_b64 s[{S_G1}:{S_G1+1}], s[{S_G1}:{S_G1+1}], 0
""")
    st("E3")
    flag_wait(a, LANDED(2), 8)
    L=if_grp(a,1); flag_wait(a, DONE(1), 8); a(f"{L}:")
    st("W4")
    def slot2(normal):
        n0=st.n
        a(f"s_mov_b64 vcc, s[{S_G1}:{S_G1+1}]")
        mphase2(a,0,0,normal,DM,lambda d: {PFK:[pf_txt(a,3)]} if (normal or d) else {19:[signal_txt(a,"lt",0)], PFK:[pf_txt(a,3)]})
        st("M4")
        L=a.label("p1x")
        a(f"s_cmp_eq_u32 s{S_XTRA}, 0")
        a(f"s_cbranch_scc1 {L}")
        flag_wait(a, DONE(1), 8)
        for _ in range(9): a(dma_one(a))
        a(f"{L}:")
        if normal: epi_v(a,0,pre=landed(3,1))
        else: either("ge",8, lambda: epi_qk(a,0,pre=landed(3,1)), lambda: epi_z1(a,0,pre=landed(3,1)))
        st("E4")
        mphase(a,0,1,normal=normal,extra={21:[poll_load()]})
        st("M5")
        poll_and_load(a)
        L=if_grp(a,0); flag_add(a, LANDED(3)); a(f"{L}:")
        def pre():
            a("s_waitcnt vmcnt(0)")
            stats_reduce(a)
        if normal: epi_v(a,1,pre=pre)
        else: either("ge",8, lambda: epi_qk(a,1,pre=pre), lambda: epi_z1(a,1,pre=pre))
        return n0
    Lv=a.label("p1v"); Lend2=a.label("p1e2")
    a(f"s_cmp_ge_u32 s{S_CG}, 26")
    a(f"s_cbranch_scc1 {Lv}")
    n0=slot2(False)
    a(f"s_branch {Lend2}")
    a(f"{Lv}:")
    st.n=n0
    slot2(True)
    a(f"{Lend2}:")
    st("E5")
    Lt=a.label("p1tail")
    a(f"""
s_cmp_eq_u32 s{S_XTRA}, 0
s_cbranch_scc1 {Lt}
s_sub_u32 s{S_T2}, s{S_CG}, 20
s_lshr_b32 s{S_T3}, s{S_T2}, 1
s_add_u32 s{S_COL}, s{S_T3}, 12
s_lshl_b32 s{S_COL}, s{S_COL}, 5
s_and_b32 s{S_T3}, s{S_T3}, 1
s_lshl_b32 s{S_T3}, s{S_T3}, 9
v_add_u32 v{V_T+2}, s{S_T3}, v{V_T+2}
v_add_u32 v{V_T+3}, s{S_T3}, v{V_T+3}
""")
    flag_wait(a, LANDED(3), 8)
    mphase(a,1,None,normal=True)
    epi_v(a,None)
    a(f"{Lt}:")
    st("X")
    t=V_TMP
    a(f"""
s_lshl_b32 s{S_T2}, s{S_W}, 10
s_add_u32 s{S_T2}, s{S_T2}, {SCR}
v_lshrrev_b32 v{t+4}, 2, v{V_N16}
v_add_u32 v{t+4}, s{S_T2}, v{t+4}          ; n*4
""")
    for g in range(4):
        a(f"ds_read2_b32 {v(V_A+8+2*g,2)}, v{t+4} offset0:{g*64} offset1:{g*64+32}")
    a(f"""
v_lshlrev_b32 v{t+2}, 1, v{V_N16}
v_lshl_add_u32 v{t+2}, v{V_HF8}, 1, v{t+2}
v_add_u32 v{t+2}, s{S_T2}, v{t+2}
v_lshrrev_b32 v{t+5}, 4, v{V_LANE}         ; g16 = s8 local
v_lshlrev_b32 v{t+3}, 8, v{t+5}
v_bfe_u32 v{t+6}, v{V_LANE}, 2, 2
v_lshl_add_u32 v{t+3}, v{t+6}, 5, v{t+3}
v_and_b32 v{t+6}, 3, v{V_LANE}
v_lshl_add_u32 v{t+3}, v{t+6}, 3, v{t+3}
v_add_u32 v{t+3}, s{S_T2}, v{t+3}
s_and_b32 s{S_T3}, s{S_RB32}, 1
s_lshl_b32 s{S_T0}, s{S_T3}, 9
v_lshrrev_b32 v{t+6}, 1, v{t+5}
v_lshlrev_b32 v{t+6}, 8, v{t+6}
v_and_b32 v{t+7}, 1, v{t+5}
v_lshl_add_u32 v{t+6}, v{t+7}, 5, v{t+6}
v_add_u32 v{t+6}, s{S_T0}, v{t+6}
s_lshl_b32 s{S_T0}, s{S_T3}, 6
s_add_u32 s{S_T0}, s{S_T0}, 1024
v_lshlrev_b32 v{t+7}, 4, v{t+5}
v_add_u32 v{t+7}, s{S_T0}, v{t+7}
v_and_b32 v{t+5}, 15, v{V_LANE}
v_add_lshl_u32 v{t+7}, v{t+7}, v{t+5}, 4
v_and_b32 v{t+5}, 15, v{V_SIG}             ; sigma4(lane&15)
v_add_lshl_u32 v{t+6}, v{t+6}, v{t+5}, 4
s_lshl_b32 s{S_COL}, s{S_CG}, 2
s_lshr_b32 s{S_T1}, s{S_RB32}, 1
s_mul_i32 s{S_T1}, s{S_T1}, 18432
s_add_u32 s{S_T1}, s{S_T1}, {WS_Z2N}
s_waitcnt lgkmcnt(0)
v_add_f32 v{V_SUM}, v{V_A+8}, v{V_A+10}
v_add_f32 v{V_SQ}, v{V_A+9}, v{V_A+11}
v_add_f32 v{V_A+12}, v{V_A+12}, v{V_A+14}
v_add_f32 v{V_A+13}, v{V_A+13}, v{V_A+15}
v_add_f32 v{V_SUM}, v{V_SUM}, v{V_A+12}
v_add_f32 v{V_SQ}, v{V_SQ}, v{V_A+13}
v_mul_f32 v{V_SUM}, {f32(1.0/2304):#x}, v{V_SUM}      ; mean
v_mul_f32 v{V_SQ}, {f32(1.0/2304):#x}, v{V_SQ}
v_fma_f32 v{V_SQ}, -v{V_SUM}, v{V_SUM}, v{V_SQ}       ; var
v_max_f32 v{V_SQ}, 0, v{V_SQ}
v_cvt_pk_bf16_f32 v{V_SUM}, v{V_SUM}, v{V_SQ}
v_and_b32 v{V_SQ}, 0xffff0000, v{V_SUM}
v_lshlrev_b32 v{V_SUM}, 16, v{V_SUM}
v_add_f32 v{V_SQ}, {f32(1e-5):#x}, v{V_SQ}
v_cvt_pk_bf16_f32 v{V_SQ}, v{V_SQ}, v{V_SQ}
v_lshlrev_b32 v{V_SQ}, 16, v{V_SQ}
v_sqrt_f32 v{V_SQ}, v{V_SQ}
v_cvt_pk_bf16_f32 v{V_SQ}, v{V_SQ}, v{V_SQ}
v_lshlrev_b32 v{V_SQ}, 16, v{V_SQ}
v_rcp_f32 v{V_SQ}, v{V_SQ}                             ; rstd
v_mul_f32 v{V_SUM}, v{V_SUM}, v{V_SQ}
v_sub_f32 v{V_SUM}, 0, v{V_SUM}                        ; -mean*rstd
""")
    def norm_half(hidx, gadd):
        d=V_PK+4*hidx; X=V_ACC+8*(hidx&1); o=V_B+4*(hidx&3); u=V_A+32+(hidx&3); so=40+(hidx&3)
        for i in range(4):
            a(f"v_lshlrev_b32 v{X+2*i}, 16, v{d+i}")
            a(f"v_and_b32 v{X+2*i+1}, 0xffff0000, v{d+i}")
        for i in range(8): a(f"v_fma_f32 v{X+i}, v{X+i}, v{V_SQ}, v{V_SUM}")
        for i in range(4): a(f"v_cvt_pk_bf16_f32 v{d+i}, v{X+2*i}, v{X+2*i+1}")
        a(f"ds_write_b128 v{t+2}, {v(d,4)}")
        a(f"ds_read_b64_tr_b16 {v(o,2)}, v{t+3}")
        a(f"ds_read_b64_tr_b16 {v(o+2,2)}, v{t+3} offset:128")
        a(f"""
s_add_u32 s{S_T0}, s{S_COL}, {gadd}
s_mul_i32 s{S_T2}, s{S_T0}, 57
s_lshr_b32 s{S_T2}, s{S_T2}, 9            ; nb = g/9
s_mul_i32 s{S_T3}, s{S_T2}, 9
s_sub_u32 s{S_T0}, s{S_T0}, s{S_T3}       ; fl16
s_mul_i32 s{S_T2}, s{S_T2}, {32*18432}
s_add_u32 s{so}, s{S_T2}, s{S_T1}
s_lshr_b32 s{S_T2}, s{S_T0}, 1
s_lshl_b32 s{S_T2}, s{S_T2}, 10
s_and_b32 s{S_T3}, s{S_T0}, 1
s_lshl_b32 s{S_T3}, s{S_T3}, 8
s_add_u32 s{S_T2}, s{S_T2}, s{S_T3}
s_cmp_eq_u32 s{S_T0}, 8
s_cselect_b32 s{S_T2}, 0, s{S_T2}
s_cselect_b64 vcc, -1, 0
s_add_u32 s{so}, s{so}, s{S_T2}
v_cndmask_b32 v{u}, v{t+6}, v{t+7}, vcc
""")
    def norm_store(hidx, cnt):
        o=V_B+4*(hidx&3); u=V_A+32+(hidx&3); so=40+(hidx&3)
        a(f"s_waitcnt lgkmcnt({cnt})")
        a(f"buffer_store_dwordx4 {v(o,4)}, v{u}, {s(S_WS,4)}, s{so} offen{WT}")
    for base,g0 in ((0,0),(4,128)):
        if base:
            a(f"s_cmp_ge_u32 s{S_CG}, 4")
            a(f"s_cbranch_scc1 {END}")
        for h in range(4):
            norm_half(base+h, g0+h)
            if h: norm_store(base+h-1, 3)
        norm_store(base+3, 0)
    a(f"{END}:")
    if STAMP:
        st("norm")
        a("s_waitcnt vmcnt(0)")
        st("end")
        a(f"s_lshl_b32 s{S_T2}, s2, 3")
        a(f"s_add_u32 s{S_T2}, s{S_T2}, s{S_W}")
        st.dump(S_WS, S_T2, WS_DBG, V_TMP)
    a(f"{END}_x:")
    a("s_endpgm")
    return NV
```

```python
from asmlib import *
from layout import *
import math, os
PART=19584
LDS=8*PART
BLOCK=576
N0=int(os.environ.get('P3N0','14')); N1=(72-4*N0)//2
S_WS=8; S_X=12; S_OUT=16
S_W=20; S_RB=21; S_CB=22; S_SH=23; S_SWF=24; S_T0=25; S_T1=26; S_T2=27; S_XO=32; S_N=33
def gen_p3(a, name="p3_kernel"):
    kernel_begin(a, name)
    END=f"{name}_end"
    V_L=1; V_L16=2; V_HALF=3; V_LD=4; V_GO=5; T=6; X=12
    ACC=16; FR=96
    st=Stamper(a)
    a(f"""
s_cmp_ge_u32 s2, 256
s_cbranch_scc1 {END}_x
""")
    st("start")
    a(f"""
s_load_dwordx2 s[4:5], s[0:1], {KA_WS}
s_load_dwordx2 s[6:7], s[0:1], {KA_X}
s_load_dwordx2 s[28:29], s[0:1], {KA_OUT}
s_and_b32 s{S_T0}, s2, 7
s_lshr_b32 s{S_T1}, s2, 3
s_lshr_b32 s{S_RB}, s{S_T0}, 1
s_lshl_b32 s{S_RB}, s{S_RB}, 3
s_lshr_b32 s{S_T2}, s{S_T1}, 2
s_add_u32 s{S_RB}, s{S_RB}, s{S_T2}
s_and_b32 s{S_CB}, s{S_T0}, 1
s_lshl_b32 s{S_CB}, s{S_CB}, 2
s_and_b32 s{S_T2}, s{S_T1}, 3
s_add_u32 s{S_CB}, s{S_CB}, s{S_T2}
v_lshrrev_b32 v1, 6, v0
v_readfirstlane_b32 s{S_W}, v1
v_and_b32 v{V_L}, 63, v0
v_lshlrev_b32 v{V_L16}, 4, v{V_L}
v_and_b32 v{T}, 15, v{V_L}
v_lshrrev_b32 v{T+1}, 4, v{V_L}
v_lshlrev_b32 v{T+2}, 4, v{T}
v_lshl_add_u32 v{T+2}, v{T+1}, 7, v{T+2}
v_add_u32 v{T+2}, 4096, v{T+2}
v_mov_b32 v{T+3}, 0x7f000000
v_cmp_gt_u32 vcc, 8, v{T}
v_cndmask_b32 v{V_HALF}, v{T+3}, v{T+2}, vcc
s_mul_i32 s{S_T0}, s{S_W}, {N0}
s_cmp_eq_u32 s{S_W}, 5
s_cselect_b32 s{S_T0}, {4*N0+N1}, s{S_T0}
s_cmp_eq_u32 s{S_W}, 6
s_cselect_b32 s{S_T0}, 72, s{S_T0}
s_cmp_eq_u32 s{S_W}, 7
s_cselect_b32 s{S_T0}, 81, s{S_T0}
s_cmp_lt_u32 s{S_W}, 6
s_cselect_b32 s{S_N}, {(N1-2)//2}, 3
s_cmp_lt_u32 s{S_W}, 4
s_cselect_b32 s{S_N}, {(N0-2)//2}, s{S_N}
s_mul_i32 s{S_SH}, s{S_RB}, {4*92160}
s_lshl_b32 s{S_T1}, s{S_T0}, 10
s_add_u32 s{S_SH}, s{S_SH}, s{S_T1}
s_add_u32 s{S_SH}, s{S_SH}, {WS_HO}
s_mul_i32 s{S_SWF}, s{S_CB}, {90*4608}
s_mul_i32 s{S_T1}, s{S_T0}, 4608
s_add_u32 s{S_SWF}, s{S_SWF}, s{S_T1}
s_add_u32 s{S_SWF}, s{S_SWF}, {WS_WF}
; final-phase task: t = tid/9, d8 = tid%9
v_mul_u32_u24 v{T}, 7282, v0
v_lshrrev_b32 v{T}, 16, v{T}
v_mul_u32_u24 v{T+1}, 9, v{T}
v_sub_u32 v{T+1}, v0, v{T+1}
v_mul_u32_u24 v{V_GO}, 1152, v{T}
v_lshl_add_u32 v{V_GO}, v{T+1}, 4, v{V_GO}
s_mul_i32 s{S_XO}, s{S_RB}, {64*1152}
s_mul_i32 s{S_T1}, s{S_CB}, 144
s_add_u32 s{S_XO}, s{S_XO}, s{S_T1}
v_lshrrev_b32 v{T+3}, 4, v{T}
v_mul_u32_u24 v{T+3}, 4896, v{T+3}
v_mul_u32_u24 v{T+4}, 544, v{T+1}
v_add_u32 v{T+3}, v{T+3}, v{T+4}
v_and_b32 v{T+4}, 15, v{T}
v_lshl_add_u32 v{T+3}, v{T+4}, 4, v{T+3}
v_add_u32 v{T+4}, {3*PART}, v{T+3}
v_add_u32 v{T+5}, {6*PART}, v{T+3}
s_mul_i32 s{S_T0}, s{S_W}, {PART}
v_and_b32 v{V_LD}, 48, v{V_L}
v_add3_u32 v{V_LD}, s{S_T0}, v{V_L16}, v{V_LD}   ; + g*16 padding
s_waitcnt lgkmcnt(0)
""")
    srd(a, S_WS, 4, WS_END)
    srd(a, S_X, 6, 2048*1152)
    srd(a, S_OUT, 28, 2048*1152)
    Lfin=a.label("p3fin")
    a(f"s_cmp_eq_u32 s{S_W}, 8")
    a(f"s_cbranch_scc1 {Lfin}")
    def loads(par):
        b=FR+36*par
        for fr in range(4):
            a(f"buffer_load_dwordx4 {v(b+16+4*fr,4)}, v{V_L16}, {s(S_WS,4)}, s{S_SWF} offen offset:{fr*1024}")
        a(f"buffer_load_dwordx4 {v(b+32,4)}, v{V_HALF}, {s(S_WS,4)}, s{S_SWF} offen")
        for tt in range(4):
            if tt: a(f"s_add_u32 s{S_T0}, s{S_SH}, {tt*92160}")
            a(f"buffer_load_dwordx4 {v(b+4*tt,4)}, v{V_L16}, {s(S_WS,4)}, s{S_T0 if tt else S_SH} offen")
        a(f"s_add_u32 s{S_SH}, s{S_SH}, 1024")
        a(f"s_add_u32 s{S_SWF}, s{S_SWF}, 4608")
    def mm(par):
        b=FR+36*par
        for tt in range(4):
            for fr in range(5):
                ac=v(ACC+4*(tt*5+fr),4)
                a(f"v_mfma_f32_16x16x32_bf16 {ac}, {v(b+16+4*fr,4)}, {v(b+4*tt,4)}, {ac}")
    Lev=a.label("p3ev")
    loads(0); loads(1)
    for i in range(80): a(f"v_mov_b32 v{ACC+i}, 0")
    a(f"s_cmp_lt_u32 s{S_W}, 6")
    a(f"s_cbranch_scc1 {Lev}")
    a("s_waitcnt vmcnt(0)")
    mm(1); loads(1)
    a(f"{Lev}:")
    Lp=a.label("p3loop")
    a(f"{Lp}:")
    a("s_waitcnt vmcnt(9)"); mm(0); loads(0)
    a("s_waitcnt vmcnt(9)"); mm(1); loads(1)
    a(f"s_sub_u32 s{S_N}, s{S_N}, 1")
    a(f"s_cmp_lg_u32 s{S_N}, 0")
    a(f"s_cbranch_scc1 {Lp}")
    a(f"buffer_load_dwordx4 {v(X,4)}, v{V_GO}, {s(S_X,4)}, s{S_XO} offen")
    a("s_waitcnt vmcnt(10)"); mm(0)
    a("s_waitcnt vmcnt(1)"); mm(1)
    st("loop")
    for tt in range(4):
        for fr in range(4):
            a(f"ds_write_b128 v{V_LD}, {v(ACC+4*(tt*5+fr),4)} offset:{tt*4896+fr*1088}")
    a("s_mov_b64 exec, 0xffffffff")
    for tt in range(4):
        a(f"ds_write_b128 v{V_LD}, {v(ACC+4*(tt*5+4),4)} offset:{tt*4896+4352}")
    a("s_mov_b64 exec, -1")
    a("s_waitcnt lgkmcnt(0)")
    Lb=a.label("p3b")
    a(f"s_branch {Lb}")
    a(f"{Lfin}:")
    a(f"buffer_load_dwordx4 {v(X,4)}, v{V_GO}, {s(S_X,4)}, s{S_XO} offen")
    if STAMP:
        st.n-=1; st("loop")
    a(f"{Lb}:")
    a("s_barrier")
    st("red")
    for p in range(8):
        base=T+3+p//3; off=(p%3)*PART
        a(f"ds_read_b128 {v(ACC+8*p,4)}, v{base} offset:{off}")
        a(f"ds_read_b128 {v(ACC+8*p+4,4)}, v{base} offset:{off+272}")
        if p==6: a("s_waitcnt lgkmcnt(10)")
    B=ACC; Sg=ACC+48; U=ACC+64; E=B+8
    a("s_waitcnt lgkmcnt(8)")
    for i in range(8):
        a(f"v_add_f32 v{B+i}, v{B+i}, v{B+8+i}")
        a(f"v_add_f32 v{B+16+i}, v{B+16+i}, v{B+24+i}")
    a("s_waitcnt lgkmcnt(4)")
    for i in range(8):
        a(f"v_add_f32 v{B+32+i}, v{B+32+i}, v{B+40+i}")
        a(f"v_add_f32 v{B+i}, v{B+i}, v{B+16+i}")
    a("s_waitcnt lgkmcnt(0)")
    for i in range(8):
        a(f"v_add_f32 v{B+i}, v{B+i}, v{B+32+i}")
        a(f"v_add_f32 v{Sg+i}, v{Sg+i}, v{Sg+8+i}")
    def rnd(base):
        for i in range(4): a(f"v_cvt_pk_bf16_f32 v{U+i}, v{base+2*i}, v{base+2*i+1}")
        for i in range(4):
            a(f"v_lshlrev_b32 v{base+2*i}, 16, v{U+i}")
            a(f"v_and_b32 v{base+2*i+1}, 0xffff0000, v{U+i}")
    rnd(B); rnd(Sg)
    for i in range(8): a(f"v_mul_f32 v{E+i}, {f32(-math.log2(math.e)):#x}, v{B+i}")
    for i in range(8): a(f"v_exp_f32 v{E+i}, v{E+i}")
    for i in range(8): a(f"v_add_f32 v{E+i}, 1.0, v{E+i}")
    for i in range(8): a(f"v_rcp_f32 v{E+i}, v{E+i}")
    for i in range(8): a(f"v_mul_f32 v{B+i}, v{B+i}, v{E+i}")
    rnd(B)
    for i in range(8): a(f"v_mul_f32 v{B+i}, v{B+i}, v{Sg+i}")
    rnd(B)
    a("s_waitcnt vmcnt(0)")
    for i in range(4):
        a(f"v_lshlrev_b32 v{E+2*i}, 16, v{X+i}")
        a(f"v_and_b32 v{E+2*i+1}, 0xffff0000, v{X+i}")
    for i in range(8): a(f"v_add_f32 v{B+i}, v{B+i}, v{E+i}")
    for i in range(4): a(f"v_cvt_pk_bf16_f32 v{U+i}, v{B+2*i}, v{B+2*i+1}")
    a(f"buffer_store_dwordx4 {v(U,4)}, v{V_GO}, {s(S_OUT,4)}, s{S_XO} offen{WT3}")
    a(f"{END}:")
    if STAMP:
        st("fin")
        a("s_waitcnt vmcnt(0)")
        st("end")
        a(f"s_mul_i32 s{S_T2}, s2, 9")
        a(f"s_add_u32 s{S_T2}, s{S_T2}, s{S_W}")
        st.dump(S_WS, S_T2, WS_DBG+524288, 10)
    a(f"{END}_x:")
    a("s_endpgm")
    return 168
```

```python
import sys
sys.path.insert(0,'gen')
from asmlib import *
from layout import *
import p0, p1
HEADER = open('recurrent_scan__mha_block__mixer_gmlp__prompt.s.ref').read().split("; Override launch")[0]
def build(kernels, path):
    a = Asm(); descs=""; launches=""
    for name, fn, grid, block, lds in kernels:
        r = fn(a, name)
        nv, accum = r if isinstance(r, tuple) else (r, None)
        descs += descriptor(name, nv, accum=accum)
        launches += f"; @launch kernel={name} grid=({grid},1,1) block=({block},1,1) lds={lds}\n"
    a.fix_hazards()
    out = HEADER + "; generated by gen/build.py\n" + launches + '.amdgcn_target "amdgcn-amd-amdhsa--gfx950"\n.text\n' + a.text() + '.section .rodata,"a"\n' + descs
    open(path,"w").write(out)
if __name__=="__main__":
    ks=[("p0_kernel", p0.gen_p0, 256, 256, 0), ("p1_kernel", p1.gen_p1, 256, 512, p1.LDS)]
    try:
        import os, importlib
        p2 = importlib.import_module(os.environ.get('P2M','p2')); ks.append(("p2_kernel", p2.gen_p2, 256, 512, p2.LDS))
        import p3; ks.append(("p3_kernel", p3.gen_p3, 256, p3.BLOCK, p3.LDS))
    except ImportError as e:
        print("partial build:", e)
    build(ks, sys.argv[1] if len(sys.argv)>1 else "cur.s")
```
